```python
import torch

def _softmax(x, axis=-1):
    return torch.softmax(x, dim=axis)
def _gelu(x):
    return torch.nn.functional.gelu(x, approximate="tanh")
def _silu(x):
    return torch.nn.functional.silu(x)
def _sigmoid(x):
    return torch.sigmoid(x)
def _layernorm(x, axis=-1, eps=1e-5):
    m = x.mean(dim=axis, keepdim=True)
    v = x.var(dim=axis, keepdim=True, unbiased=False)
    return (x - m) / torch.sqrt(v + eps)
def _scatter_add(tgt, idx, src, axis=0):
    return tgt.clone().index_add_(axis, idx, src)
def _segment_sum(src, seg, n):
    out = torch.zeros((n,) + src.shape[1:], dtype=src.dtype)
    return out.index_add_(0, seg, src)
def _pad(x, pw):
    flat = tuple(v for pair in reversed(pw) for v in pair)
    return torch.nn.functional.pad(x, flat)

kernel_name = 'parallel_sum__softmax_full_mha__glu_gated_reglu__prompt'

def setup_inputs():

    _w = (lambda a: (lambda t: t.to(torch.bfloat16) if t.is_floating_point() else t)(torch.as_tensor(a)))
    def _A_setup():
        B, S, D = 1, 2048, 512
        return {
            "x": _w((lambda *s: torch.randn(*s, dtype=torch.bfloat16) * 0.05)(B, S, D)),
            "wqkv": _w((lambda *s: torch.randn(*s, dtype=torch.bfloat16) * 0.05)(D, 3 * D)),
            "wo": _w((lambda *s: torch.randn(*s, dtype=torch.bfloat16) * 0.05)(D, D)),
        }
    _A_in = _A_setup()

    def _B_setup():
        B, S, D, F = 1, 2048, 512, 1376
        return {
            "x": _w((lambda *s: torch.randn(*s, dtype=torch.bfloat16) * 0.05)(B, S, D)),
            "W_gate": _w((lambda *s: torch.randn(*s, dtype=torch.bfloat16) * 0.4)(D, F) * (2.0 / D) ** 0.5),
            "W_up": _w((lambda *s: torch.randn(*s, dtype=torch.bfloat16) * 0.4)(D, F) * (2.0 / D) ** 0.5),
            "W_down": _w((lambda *s: torch.randn(*s, dtype=torch.bfloat16) * 0.4)(F, D) * (1.0 / F) ** 0.5),
        }
    _B_in = _B_setup()

    return {
        "A_x": _A_in["x"],
        "A_wqkv": _A_in["wqkv"],
        "A_wo": _A_in["wo"],
        "B_x": _B_in["x"],
        "B_W_gate": _B_in["W_gate"],
        "B_W_up": _B_in["W_up"],
        "B_W_down": _B_in["W_down"],
    }

def reference(A_x, A_wqkv, A_wo, B_x, B_W_gate, B_W_up, B_W_down):
    def _A_ref(x, wqkv, wo):
        B, S, D = x.shape
        H = 32; Dh = D // H
        qkv = (lambda x, *d: x.permute(*d))((x @ wqkv).reshape(B, S, 3, H, Dh), 2, 0, 3, 1, 4)
        q, k, v = qkv[0], qkv[1], qkv[2]
        scale = Dh ** -0.5
        scores = torch.einsum("bhqd,bhkd->bhqk", q, k) * scale
        p = _softmax(scores, axis=-1)
        o = torch.einsum("bhqk,bhkd->bhqd", p, v)
        return (lambda x, *d: x.permute(*d))(o, 0, 2, 1, 3).reshape(B, S, D) @ wo

    def _B_ref(x, W_gate, W_up, W_down):
        gate = torch.einsum("bsd,df->bsf", x, W_gate)
        up = torch.einsum("bsd,df->bsf", x, W_up)
        gate = gate * (lambda x, dt: x.to(dt))(gate > 0, gate.dtype)
        h = gate * up
        return torch.einsum("bsf,fd->bsd", h, W_down)

    x = A_x
    xn = _layernorm(x, axis=-1)
    return x + _A_ref(xn, A_wqkv, A_wo) + _B_ref(xn, B_W_gate, B_W_up, B_W_down)
```

```python
import re

TRANS = ("v_exp_", "v_log_", "v_rcp_", "v_rsq_", "v_sqrt_", "v_sin_", "v_cos_")
REG = re.compile(r"(?<![\w.])([vas])(?:(\d+)|\[(\d+):(\d+)\])(?![\w])")


def regs_of(tok):
    out = set()
    for m in REG.finditer(tok):
        k = m.group(1)
        if m.group(2) is not None:
            out.add((k, int(m.group(2))))
        else:
            out.update((k, i) for i in range(int(m.group(3)), int(m.group(4)) + 1))
    if re.search(r"\bvcc\b", tok):
        out.add(("s", "vcc"))
    if re.search(r"\bm0\b", tok):
        out.add(("s", "m0"))
    if re.search(r"\bexec\b", tok):
        out.add(("s", "exec"))
    return out


def split_ops(s):
    ops, depth, cur = [], 0, ""
    for ch in s:
        if ch == "[":
            depth += 1
        if ch == "]":
            depth -= 1
        if ch == "," and depth == 0:
            ops.append(cur.strip()); cur = ""
        else:
            cur += ch
    if cur.strip():
        ops.append(cur.strip())
    return ops


class Ins:
    def __init__(self, text):
        self.text = text
        t = text.split(";")[0].strip()
        self.label = t.endswith(":")
        self.directive = t.startswith(".") or not t
        self.op = t.split()[0] if t else ""
        self.real = not (self.label or self.directive)
        rest = t[len(self.op):].strip()
        ops = split_ops(rest) if self.real else []
        self.ops = ops
        op = self.op
        self.mfma = op.startswith("v_mfma")
        self.valu = op.startswith("v_") and not self.mfma
        self.trans = op.startswith(TRANS)
        self.dot = op.startswith("v_dot")
        self.ds = op.startswith("ds_")
        self.vmem = op.startswith(("buffer_", "global_"))
        self.salu = op.startswith("s_")
        self.ldsdma = self.vmem and re.search(r"\blds\b", t) is not None or op.startswith("global_load_lds")
        self.dpp = "dpp" in op or "row_" in t or "quad_perm" in t
        self.dst, self.src = set(), set()
        self.srcC = set(); self.srcAB = set(); self.wide_data = set()
        R = [regs_of(o) for o in ops]
        if not self.real:
            return
        if self.mfma:
            self.dst = R[0]; self.srcAB = R[1] | R[2]; self.srcC = R[3]; self.src = self.srcAB | self.srcC
            self.passes = 8 if "32x32" in op else 4
        elif self.valu:
            self.dst = set(R[0]) if R else set()
            rest_src = R[1:]
            if op.startswith(("v_add_co", "v_sub_co", "v_addc_co", "v_subb_co")):
                self.dst |= R[1]; rest_src = R[2:]
            for r in rest_src:
                self.src |= r
            if op.startswith(("v_permlane16_swap", "v_permlane32_swap", "v_swap")):
                self.dst |= R[1]; self.src |= R[0]
            if op.startswith(("v_dot2c", "v_fmac", "v_mac", "v_pk_fmac")) or "UNUSED_PRESERVE" in t or self.dpp:
                self.src |= R[0]
            if op.startswith("v_cmpx"):
                self.dst.add(("s", "exec"))
        elif self.ds:
            if op.startswith("ds_read") or "_rtn" in op or op.startswith(("ds_bpermute", "ds_permute", "ds_swizzle")):
                self.dst = R[0]
                for r in R[1:]:
                    self.src |= r
            else:
                for r in R:
                    self.src |= r
        elif self.vmem:
            if "load" in op and not self.ldsdma:
                self.dst = R[0]
                for r in R[1:]:
                    self.src |= r
            else:
                for r in R:
                    self.src |= r
                if "atomic" in op and re.search(r"\bsc0\b", t):
                    self.dst = R[0]
                if "store" in op and ("x4" in op or "x3" in op):
                    self.wide_data = R[0] if op.startswith("buffer") else R[1]
            if self.ldsdma:
                self.src.add(("s", "m0"))
        elif self.salu:
            if op.startswith(("s_cmp", "s_cbranch", "s_branch", "s_waitcnt", "s_nop", "s_barrier", "s_endpgm", "s_setprio", "s_sleep", "s_bitcmp")):
                for r in R:
                    self.src |= r
            else:
                self.dst = set(R[0]) if R else set()
                for r in R[1:]:
                    self.src |= r
                if "saveexec" in op:
                    self.dst.add(("s", "exec"))

    def states(self):
        if not self.real:
            return 0
        if self.op == "s_nop":
            return int(self.ops[0]) + 1
        return 1


def need(p, c):
    n = 0
    vec = lambda S: {r for r in S if r[0] in "va"}
    sca = lambda S: {r for r in S if r[0] == "s"}
    if p.valu:
        w = vec(p.dst)
        if c.mfma and w & c.src:
            n = max(n, 3 if p.dot else 2)
        if p.trans and c.valu and not c.trans and w & c.src:
            n = max(n, 1)
        if c.op.startswith(("v_readlane", "v_readfirstlane")) and w & c.src:
            n = max(n, 1)
        if (c.op.startswith("v_permlane") or c.dpp) and w & c.src:
            n = max(n, 2)
        if p.dot and (c.valu or c.vmem or c.ds) and w & (c.src | c.dst):
            if c.op == p.op:
                ab = set()
                for o in c.ops[1:3]:
                    ab |= regs_of(o)
                if w & ab:
                    n = max(n, 3)
            else:
                n = max(n, 3)
        if ("op_sel" in p.text or "sdwa" in p.op) and c.valu and w & (c.src | c.dst):
            n = max(n, 1)
        ws = sca(p.dst)
        if ws:
            if c.vmem and ws & c.src:
                n = max(n, 5)
            if c.valu and ws & c.src:
                n = max(n, 4 if c.op.startswith(("v_readlane", "v_writelane")) else 2)
            if ("s", "exec") in ws and (c.mfma or c.op.startswith(("v_read", "v_write", "v_perm"))):
                n = max(n, 4)
            if ("s", "exec") in ws and c.dpp:
                n = max(n, 5)
    if p.mfma:
        big = p.passes == 8
        if c.mfma:
            if p.dst & c.srcAB:
                n = max(n, 12 if big else 8)
            if p.dst & c.srcC and (p.dst != c.srcC or p.passes != c.passes):
                n = max(n, 10 if big else 6)
        elif (c.valu or c.vmem or c.ds) and p.dst & (c.src | c.dst):
            n = max(n, 12 if big else 8)
        if c.valu and p.srcC & c.dst:
            n = max(n, 7 if big else 3)
    if p.salu and ("s", "m0") in p.dst and (c.ldsdma or "addtid" in c.op):
        n = max(n, 1)
    if p.wide_data and p.wide_data & c.dst:
        n = max(n, 2 if (c.valu or c.mfma) else 1)
    return n


def fix_hazards(lines):
    ins = [Ins(l) for l in lines]
    out = []
    added = 0
    for c in ins:
        if c.real:
            dist = 0; pad = 0
            for p in reversed(out):
                if dist >= 20:
                    break
                if p.real:
                    if p.op in ("s_branch", "s_endpgm"):
                        break
                    pad = max(pad, need(p, c) - dist)
                    dist += p.states()
            if pad > 0:
                out.append(Ins(f"    s_nop {pad-1}")); added += 1
        out.append(c)
    labels = {i.text.split(";")[0].strip()[:-1]: k for k, i in enumerate(out) if i.label}
    for k, b in enumerate(out):
        if b.op.startswith(("s_cbranch", "s_branch")):
            tgt = labels[b.ops[0]]
            after = []
            d = 0
            for c in out[tgt:]:
                if c.real:
                    after.append((c, d)); d += c.states()
                    if d >= 20 or c.op in ("s_branch", "s_endpgm"):
                        break
            dist = 0
            for p in reversed(out[:k + 1]):
                if dist >= 20:
                    break
                if p.real:
                    if p is not b and p.op in ("s_branch", "s_endpgm"):
                        break
                    for c, d in after:
                        if need(p, c) > dist + d:
                            raise SystemExit(f"hazard across branch {b.text.strip()}: {p.text.strip()} -> {c.text.strip()}")
                    dist += p.states()
    return [i.text for i in out], added


class Prog:
    def __init__(self, name):
        self.name = name
        self.lines = []
        self.vm = []
        self.lg = []

    def __call__(self, s, vm=None, lg=None):
        for l in s.split("\n"):
            l = l.strip()
            if not l:
                continue
            self.lines.append(l if (l.endswith(":") or l.startswith(".")) else "    " + l)
            op = l.split()[0]
            if op.startswith(("buffer_", "global_")) and not op.startswith(("buffer_inv", "buffer_wb")):
                self.vm.append(vm)
            if op.startswith("ds_"):
                self.lg.append(lg)

    def label(self, s):
        self.lines.append(s + ":")

    def _cnt(self, q, tag):
        idx = [i for i, t in enumerate(q) if t == tag]
        if not idx:
            return None
        return len(q) - 1 - idx[-1]

    def wait(self, vm=None, lg=None):
        parts = []
        if vm is not None:
            n = 0 if vm == "all" else self._cnt(self.vm, vm)
            if n is not None:
                n = min(n, 63)
                parts.append(f"vmcnt({n})"); self.vm = self.vm[len(self.vm) - n:] if n else []
        if lg is not None:
            n = 0 if lg == "all" else self._cnt(self.lg, lg)
            if n is not None:
                n = min(n, 15)
                parts.append(f"lgkmcnt({n})"); self.lg = self.lg[len(self.lg) - n:] if n else []
        if parts:
            self.lines.append("    s_waitcnt " + " ".join(parts))

    def srd(self, d, base, nbytes):
        self(f"s_mov_b32 s{d}, s{base}\ns_mov_b32 s{d+1}, s{base+1}\ns_mov_b32 s{d+2}, {nbytes}\ns_mov_b32 s{d+3}, 0x20000")


def v(i, n=1):
    return f"v{i}" if n == 1 else f"v[{i}:{i+n-1}]"


def a(i, n=1):
    return f"a{i}" if n == 1 else f"a[{i}:{i+n-1}]"


def s(i, n=1):
    return f"s{i}" if n == 1 else f"s[{i}:{i+n-1}]"


def mfma(d, x, y, c):
    return f"v_mfma_f32_32x32x16_bf16 {d}, {x}, {y}, {c}"


def finish(header, kernels, launches):
    out = list(header)
    for name, grid, block, lds in launches:
        kn = f"kernel={name} " if len(launches) > 1 else ""
        out.append(f"; @launch {kn}grid=({grid},1,1) block=({block},1,1) lds={lds}")
    out.append('.amdgcn_target "amdgcn-amd-amdhsa--gfx950"')
    out.append(".text")
    for p, nv, na in kernels:
        lines, added = fix_hazards(p.lines)
        out += [f".globl {p.name}", ".p2align 8", f".type {p.name},@function", f"{p.name}:"]
        out += lines
    out.append('.section .rodata,"a"')
    for p, nv, na in kernels:
        acc = (nv + 3) // 4 * 4
        out += [".p2align 6", f".amdhsa_kernel {p.name}", f"  .amdhsa_next_free_vgpr {acc + na if na else nv}",
                "  .amdhsa_next_free_sgpr 100", f"  .amdhsa_accum_offset {acc}", "  .amdhsa_group_segment_fixed_size 0",
                "  .amdhsa_kernarg_size 80", "  .amdhsa_user_sgpr_count 2", "  .amdhsa_user_sgpr_kernarg_segment_ptr 1",
                "  .amdhsa_system_sgpr_workgroup_id_x 1", "  .amdhsa_float_denorm_mode_32 3", "  .amdhsa_ieee_mode 0", ".end_amdhsa_kernel"]
    return "\n".join(out) + "\n"
```

```python
from asm import Prog, v, a, s, mfma

MB = 1 << 20
WS_XN, WS_Q, WS_K, WS_V, WS_O, WS_H, WS_Y, WS_TS = 0, 2 * MB, 4 * MB, 6 * MB, 8 * MB, 10 * MB, 16 * MB, 24 * MB
WS_BYTES = 32 * MB
QSCALE = 0.25 * 1.4426950408889634
TS_BASE = 80


def f32hex(x):
    import struct
    return "0x%08x" % struct.unpack("<I", struct.pack("<f", x))[0]


class Stamps:
    def __init__(self, p, on, kidx, nwaves):
        self.p, self.on, self.kidx, self.n, self.nwaves = p, on, kidx, 0, nwaves

    def mark(self):
        if not self.on:
            return
        assert self.n < 7
        self.p(f"s_memrealtime s[{TS_BASE + 2*self.n}:{TS_BASE + 2*self.n + 1}]")
        self.n += 1

    def flush(self, srd, swave, vt):
        if not self.on:
            return
        p = self.p
        p("s_waitcnt vmcnt(0)")
        self.mark()
        p("s_waitcnt lgkmcnt(0)")
        p(f"s_mul_i32 s94, s2, {self.nwaves}\ns_add_u32 s94, s94, {swave}\ns_lshl_b32 s94, s94, 5")
        p(f"s_add_u32 s94, s94, {WS_TS + self.kidx * 0x40000}")
        p("s_mov_b64 exec, -1")
        p(f"v_mov_b32 v{vt}, 0")
        for i in range(self.n):
            p(f"v_mov_b32 v{vt+1}, s{TS_BASE + 2*i}")
            p(f"buffer_store_dword v{vt+1}, v{vt}, s[{srd}:{srd+3}], s94 offen offset:{4*i}")
            p("s_waitcnt vmcnt(0)")
```

```python
from common import *

RED_TILE = 2304
RED_BYTES = 4 * 6 * RED_TILE


def attn_body(p, ts, sS, sw, lds_red, pre_barrier=None):
    shead, sqb, stmp, sK, sV, scnt, sEx = 24, 25, 26, 27, 28, 29, 30
    sQ = 32
    vl, vt0, vt1 = 1, 2, 3
    vK, vV, vRW, vRW1, vRR, vRR1 = 4, 5, 6, 7, 8, 9
    T, P, S, Q, KV = 10, 16, 24, 56, 88
    p(f"""s_and_b32 s{shead}, s2, 7
        s_lshl_b32 s{shead}, s{shead}, 2
        s_bfe_u32 s{stmp}, s2, 0x20003
        s_add_u32 s{shead}, s{shead}, s{stmp}
        s_lshr_b32 s{sqb}, s2, 5
        s_lshl_b32 s{sK}, s{shead}, 2
        s_add_u32 s{sK}, s{sK}, s{sw}
        s_lshl_b32 s{sK}, s{sK}, 14
        s_add_u32 s{sV}, s{sK}, {WS_V}
        s_add_u32 s{sK}, s{sK}, {WS_K}
        s_mov_b32 s{sEx}, 0x0000ffff
        s_mov_b32 s{sEx+1}, 0x0000ffff
        v_lshlrev_b32 v{vK}, 4, v{vl}
        v_lshrrev_b32 v{vt0}, 5, v{vl}
        v_and_b32 v{vt1}, 15, v{vl}
        v_lshlrev_b32 v{vt1}, 4, v{vt1}
        v_lshl_add_u32 v{vV}, v{vt0}, 8, v{vt1}""")
    for j in range(8):
        p(f"""s_lshl_b32 s{stmp}, s{sw}, 1
            s_add_u32 s{stmp}, s{stmp}, {2 + j}
            s_and_b32 s{stmp}, s{stmp}, 7
            s_lshl_b32 s{sQ+j}, s{sqb}, 3
            s_add_u32 s{sQ+j}, s{sQ+j}, s{stmp}""")
    for b in range(3):
        for r in range(8):
            p(f"v_mov_b32 v{KV + 12*b + 4 + r}, 0x3f803f80")

    def kvload(b, tag):
        p(f"buffer_load_dwordx4 {v(KV + 12*b, 4)}, v{vK}, s[{sS}:{sS+3}], s{sK} offen", vm=tag)
        p(f"s_mov_b64 exec, s[{sEx}:{sEx+1}]")
        p(f"buffer_load_dwordx4 {v(KV + 12*b + 4, 4)}, v{vV}, s[{sS}:{sS+3}], s{sV} offen", vm=tag)
        p(f"buffer_load_dwordx4 {v(KV + 12*b + 8, 4)}, v{vV}, s[{sS}:{sS+3}], s{sV} offen offset:512", vm=tag)
        p("s_mov_b64 exec, -1")

    def kvadv():
        return [f"s_add_u32 s{sK}, s{sK}, 1024", f"s_add_u32 s{sV}, s{sV}, 1024"]

    p(f"s_lshl_b32 s{scnt}, s{shead}, 6")
    for j in range(8):
        p(f"""s_add_u32 s{stmp}, s{sQ+j}, s{scnt}
            s_lshl_b32 s{stmp}, s{stmp}, 10
            s_add_u32 s{stmp}, s{stmp}, {WS_Q}""")
        p(f"buffer_load_dwordx4 {v(Q + 4*j, 4)}, v{vK}, s[{sS}:{sS+3}], s{stmp} offen", vm=("q", j))
        if j == 0:
            kvload(0, ("kv", 0))
            for o in kvadv():
                p(o)
    kvload(1, ("kv", 1))
    for o in kvadv():
        p(o)
    for r in range(128):
        p(f"v_accvgpr_write_b32 a{r}, 0")
    p(f"""s_mul_i32 s{stmp}, s{sw}, {6*RED_TILE}
        s_add_u32 s{stmp}, s{stmp}, {lds_red}
        v_add_u32 v{vRW}, s{stmp}, v{vK}
        v_lshlrev_b32 v{vt0}, 2, v{vl}
        v_add_u32 v{vRW1}, s{stmp}, v{vt0}""")
    if pre_barrier:
        pre_barrier()
    p.wait(vm=("kv", 0))
    ts.mark()
    p(mfma(v(S, 16), v(KV, 4), v(Q, 4), "0"))
    p.wait(vm=("q", 7))

    def tile(j, b, first, last, extra):
        cur, nxt = S + 16 * (j & 1), S + 16 * ((j + 1) & 1)
        e = lambda k: f"v_exp_f32 v{T + k % 6}, v{cur + k}"
        c = lambda k: f"v_cvt_pk_bf16_f32 v{P + k // 2}, v{T + k % 6}, v{T + k % 6 + 1}"
        cprev = f"v_cvt_pk_bf16_f32 v{P + 7}, v{T + 14 % 6}, v{T + 14 % 6 + 1}"
        jp, bp = (j - 1) % 8, (b if j > 0 else (b - 1) % 3)
        if not last:
            jn, bn = (j + 1) % 8, (b if j < 7 else (b + 1) % 3)
            p(mfma(v(nxt, 16), v(KV + 12 * bn, 4), v(Q + 4 * jn, 4), "0"))
        for o in extra[0]:
            o() if callable(o) else p(o)
        if not first:
            p(cprev)
        for o in (e(0), e(1), e(2), c(0), e(3), e(4), c(2)):
            p(o)
        if not first:
            p(mfma(a(16 * jp, 16), v(KV + 12 * bp + 8, 4), v(P + 4, 4), a(16 * jp, 16)))
        for o in extra[1]:
            o() if callable(o) else p(o)
        for o in (e(5), e(6), c(4), e(7), e(8), c(6), e(9), e(10)):
            p(o)
        p(mfma(a(16 * j, 16), v(KV + 12 * b + 4, 4), v(P, 4), a(16 * j, 16)))
        for o in extra[2]:
            o() if callable(o) else p(o)
        for o in (c(8), e(11), e(12), c(10), e(13), e(14), c(12), e(15)):
            p(o)

    def step(b, first=False, last=False, load=True, tail=None):
        for j in range(8):
            extra = [[], [], []]
            if j == 0 and load:
                extra[1] = [lambda: kvload((b + 2) % 3, ("kv", (b + 2) % 3))]
                extra[2] = kvadv()[:1]
            if j == 1 and load:
                extra[0] = kvadv()[1:]
            if j == 6 and not last:
                extra[2] = [lambda: p.wait(vm=("kv", (b + 1) % 3))]
            if j == 7 and tail:
                extra[1] = tail[:1]; extra[2] = tail[1:]
            tile(j, b, first and j == 0, last and j == 7, extra)

    step(0, first=True)
    p(f"s_mov_b32 s{scnt}, 4")
    p(".p2align 6")
    p.label("attn_loop")
    vm0 = list(p.vm)
    step(1); step(2)
    step(0, tail=[f"s_sub_u32 s{scnt}, s{scnt}, 1", f"s_cmp_lg_u32 s{scnt}, 0"])
    assert p.vm == vm0, (p.vm, vm0)
    p("s_cbranch_scc1 attn_loop")
    step(1); step(2, load=False); step(0, last=True, load=False)
    p(f"v_cvt_pk_bf16_f32 v{P + 7}, v{T + 14 % 6}, v{T + 14 % 6 + 1}")
    p(mfma(a(112, 16), v(KV + 8, 4), v(P + 4, 4), a(112, 16)))
    ts.mark()
    for j in range(6):
        p(f"ds_write_b128 v{vRW}, {a(16*j, 4)} offset:{RED_TILE*j}")
        p(f"ds_write_b128 v{vRW}, {a(16*j + 4, 4)} offset:{RED_TILE*j + 1024}")
        p(f"ds_write_b32 v{vRW1}, a{16*j + 8} offset:{RED_TILE*j + 2048}")
    R = 24
    for t in range(2):
        for r in range(9):
            p(f"v_accvgpr_read_b32 v{R + 12*t + r}, a{16*(6+t) + r}")
    p("s_waitcnt lgkmcnt(0)\ns_barrier")
    p.lg = []
    IN = 48
    for d in range(1, 4):
        p(f"""s_add_u32 s{stmp}, s{sw}, {4 - d}
            s_and_b32 s{stmp}, s{stmp}, 3
            s_mul_i32 s{stmp}, s{stmp}, {6*RED_TILE}
            s_add_u32 s{stmp}, s{stmp}, {lds_red + (2*d - 2)*RED_TILE}
            v_add_u32 v{vRR}, s{stmp}, v{vK}
            v_lshlrev_b32 v{vt0}, 2, v{vl}
            v_add_u32 v{vRR1}, s{stmp}, v{vt0}""")
        for t in range(2):
            o = IN + 24 * (d - 1) + 12 * t
            p(f"ds_read_b128 {v(o, 4)}, v{vRR} offset:{RED_TILE*t}", lg=d)
            p(f"ds_read_b128 {v(o + 4, 4)}, v{vRR} offset:{RED_TILE*t + 1024}", lg=d)
            p(f"ds_read_b32 v{o + 8}, v{vRR1} offset:{RED_TILE*t + 2048}", lg=d)
    for d in range(1, 4):
        p.wait(lg=d)
        for t in range(2):
            for r in range(9):
                p(f"v_add_f32 v{R + 12*t + r}, v{R + 12*t + r}, v{IN + 24*(d-1) + 12*t + r}")
    sLo, sHi, sBad = 40, 41, 42
    p(f"s_mov_b32 s{sLo}, {f32hex(2.0**-60)}\ns_mov_b32 s{sHi}, {f32hex(2.0**60)}")
    for t in range(2):
        O = R + 12 * t
        p(f"""v_and_b32 v{vt0}, 0x7fffffff, v{O}
            v_max3_u32 v{vt0}, v{vt0}, v{O+8}, v{O+8}""")
        for r in range(1, 8):
            p(f"v_and_b32 v{vt1}, 0x7fffffff, v{O+r}\nv_max_u32 v{vt0}, v{vt0}, v{vt1}")
        p(f"""v_cmp_lt_u32 vcc, s{sHi}, v{vt0}
            v_cmp_gt_u32 s[{sBad}:{sBad+1}], s{sLo}, v{O+8}
            s_or_b64 vcc, vcc, s[{sBad}:{sBad+1}]
            s_cbranch_vccz attn_ok{t}""")
        fallback(p, t, O, sS, shead, sQ + 6 + t, vK, vV, sEx)
        p.label(f"attn_ok{t}")
        p(f"v_rcp_f32 v{O+8}, v{O+8}")
        p(f"""s_lshl_b32 s{stmp}, s{sQ+6+t}, 5
            s_add_u32 s{stmp}, s{stmp}, s{shead}
            s_lshl_b32 s{stmp}, s{stmp}, 10
            s_add_u32 s{stmp}, s{stmp}, {WS_O}""")
        for r in range(8):
            p(f"v_mul_f32 v{O+r}, v{O+r}, v{O+8}")
        for k in range(4):
            p(f"v_cvt_pk_bf16_f32 v{O+k}, v{O+2*k}, v{O+2*k+1}")
        p(f"buffer_store_dwordx4 {v(O, 4)}, v{vK}, s[{sS}:{sS+3}], s{stmp} offen")


def fallback(p, t, O, sS, shead, sQt, vK, vV, sEx):
    sa, sb, sc = 44, 45, 46
    Qf, Kf, Vf, S, C, Pf, M = 48, 52, 56, 64, 80, 96, 104
    p(f"""s_lshl_b32 s{sa}, s{shead}, 6
        s_add_u32 s{sa}, s{sa}, s{sQt}
        s_lshl_b32 s{sa}, s{sa}, 10
        s_add_u32 s{sa}, s{sa}, {WS_Q}
        buffer_load_dwordx4 {v(Qf, 4)}, v{vK}, s[{sS}:{sS+3}], s{sa} offen
        s_lshl_b32 s{sa}, s{shead}, 16
        s_add_u32 s{sa}, s{sa}, {WS_K}
        s_mov_b32 s{sc}, 64
        v_mov_b32 v{M}, 0xff7fffff""")
    p.label(f"attn_fb_max{t}")
    p(f"buffer_load_dwordx4 {v(Kf, 4)}, v{vK}, s[{sS}:{sS+3}], s{sa} offen\ns_waitcnt vmcnt(0)")
    p(mfma(v(S, 16), v(Kf, 4), v(Qf, 4), "0"))
    p(f"s_add_u32 s{sa}, s{sa}, 1024\ns_sub_u32 s{sc}, s{sc}, 1\ns_cmp_lg_u32 s{sc}, 0")
    for r in range(0, 16, 2):
        p(f"v_max3_f32 v{M}, v{M}, v{S+r}, v{S+r+1}")
    p(f"s_cbranch_scc1 attn_fb_max{t}")
    p(f"""v_mov_b32 v{M+1}, v{M}
        v_permlane32_swap_b32 v{M}, v{M+1}
        v_max_f32 v{M}, v{M}, v{M+1}
        s_lshl_b32 s{sa}, s{shead}, 16
        s_add_u32 s{sb}, s{sa}, {WS_V}
        s_add_u32 s{sa}, s{sa}, {WS_K}
        s_mov_b32 s{sc}, 64""")
    for r in range(16):
        p(f"v_mov_b32 v{C+r}, 0")
    for r in range(8):
        p(f"v_mov_b32 v{Vf+r}, 0x3f803f80")
    p.label(f"attn_fb_pv{t}")
    p(f"""buffer_load_dwordx4 {v(Kf, 4)}, v{vK}, s[{sS}:{sS+3}], s{sa} offen
        s_mov_b64 exec, s[{sEx}:{sEx+1}]
        buffer_load_dwordx4 {v(Vf, 4)}, v{vV}, s[{sS}:{sS+3}], s{sb} offen
        buffer_load_dwordx4 {v(Vf+4, 4)}, v{vV}, s[{sS}:{sS+3}], s{sb} offen offset:512
        s_mov_b64 exec, -1
        s_waitcnt vmcnt(0)""")
    p(mfma(v(S, 16), v(Kf, 4), v(Qf, 4), "0"))
    p(f"s_add_u32 s{sa}, s{sa}, 1024\ns_add_u32 s{sb}, s{sb}, 1024\ns_sub_u32 s{sc}, s{sc}, 1\ns_cmp_lg_u32 s{sc}, 0")
    for r in range(16):
        p(f"v_sub_f32 v{S+r}, v{S+r}, v{M}")
    for r in range(16):
        p(f"v_exp_f32 v{S+r}, v{S+r}")
    for k in range(8):
        p(f"v_cvt_pk_bf16_f32 v{Pf+k}, v{S+2*k}, v{S+2*k+1}")
    p(mfma(v(C, 16), v(Vf, 4), v(Pf, 4), v(C, 16)))
    p(mfma(v(C, 16), v(Vf + 4, 4), v(Pf + 4, 4), v(C, 16)))
    p(f"s_nop 7\ns_cbranch_scc1 attn_fb_pv{t}")
    for r in range(9):
        p(f"v_mov_b32 v{O+r}, v{C+r}")
    p.vm = []


def build(prof=False):
    p = Prog("attn_kernel")
    ts = Stamps(p, prof, 2, 4)
    sS, sw = 20, 3
    ts.mark()
    p("s_load_dwordx2 s[8:9], s[0:1], 72")
    p("s_cmp_ge_u32 s2, 256\ns_cbranch_scc1 attn_exit")
    p(f"v_lshrrev_b32 v2, 6, v0\nv_and_b32 v1, 63, v0\nv_readfirstlane_b32 s{sw}, v2")
    p("s_waitcnt lgkmcnt(0)")
    p.srd(sS, 8, WS_BYTES)
    attn_body(p, ts, sS, sw, 0)
    ts.flush(sS, f"s{sw}", 2)
    p.label("attn_exit")
    p("s_endpgm")
    return (p, 128, 128), ("attn_kernel", 256, 256, RED_BYTES)
```

```python
from common import *

SLOT = 24832
NSLOT = 6
LDS_GU = SLOT * NSLOT
DN_RING = 16
LDS_DN = 4 * DN_RING * 2048


def tr_addr_perm(p, vd, vl, t0, t1, stride_log2):
    p(f"""v_lshrrev_b32 v{t0}, 5, v{vl}
        v_lshlrev_b32 v{t0}, 2, v{t0}
        v_bfe_u32 v{t1}, v{vl}, 2, 2
        v_add_u32 v{t0}, v{t0}, v{t1}
        v_lshlrev_b32 v{t0}, {stride_log2}, v{t0}
        v_bfe_u32 v{t1}, v{vl}, 3, 1
        v_lshl_add_u32 v{t0}, v{t1}, 6, v{t0}
        v_and_b32 v{t1}, 1, v{vl}
        v_lshl_add_u32 v{t0}, v{t1}, 5, v{t0}
        v_bfe_u32 v{t1}, v{vl}, 4, 1
        v_lshl_add_u32 v{t0}, v{t1}, 4, v{t0}
        v_bfe_u32 v{t1}, v{vl}, 1, 1
        v_lshl_add_u32 v{vd}, v{t1}, 3, v{t0}""")


def w128_dma_addr(p, vd, vl, t0, t1):
    p(f"""v_bfe_u32 v{t0}, v{vl}, 4, 1
        v_lshlrev_b32 v{t0}, 2, v{t0}
        v_and_b32 v{t1}, 7, v{vl}
        v_xor_b32 v{t0}, v{t0}, v{t1}
        v_lshlrev_b32 v{t0}, 4, v{t0}
        v_lshrrev_b32 v{t1}, 3, v{vl}
        v_lshl_add_u32 v{vd}, v{t1}, 10, v{t0}""")


def build_gu(prof=False):
    p = Prog("gu_kernel")
    ts = Stamps(p, prof, 1, 4)
    sG, sU, sS = 12, 16, 20
    sw, sT, ssl, stmp, sm0, sXo, sHo = 3, 24, 25, 26, 27, 28, 29
    vl, vt0, vt1, vt2 = 1, 2, 3, 4
    vD, vR, vF = 8, 12, 15
    ACC = 32
    XF, WF = 0, 48
    ts.mark()
    p("s_load_dwordx4 s[4:7], s[0:1], 32\ns_load_dwordx2 s[8:9], s[0:1], 72")
    p("s_cmp_ge_u32 s2, 240\ns_cbranch_scc1 gu_exit")
    p(f"v_lshrrev_b32 v{vt0}, 6, v0\nv_and_b32 v{vl}, 63, v0\nv_readfirstlane_b32 s{sw}, v{vt0}")
    p(f"""s_and_b32 s{sT}, s2, 7
        s_lshl_b32 s{sT}, s{sT}, 1
        s_bfe_u32 s{stmp}, s2, 0x10003
        s_add_u32 s{sT}, s{sT}, s{stmp}
        s_lshl_b32 s{sT}, s{sT}, 2
        s_add_u32 s{sT}, s{sT}, s{sw}
        s_lshr_b32 s{ssl}, s2, 4
        s_mul_i32 s{sm0}, s{sw}, 3072
        s_lshl_b32 s{sXo}, s{sT}, 15
        s_mul_i32 s{stmp}, s{sw}, {16*2752}
        s_mul_i32 s{sHo}, s{ssl}, 192
        s_add_u32 s{stmp}, s{stmp}, s{sHo}
        v_lshlrev_b32 v{vF}, 4, v{vl}""")
    for i in range(3):
        p(f"""v_add_u32 v{vt0}, {64*i}, v{vl}
            v_mul_u32_u24 v{vt1}, 21846, v{vt0}
            v_lshrrev_b32 v{vt1}, 18, v{vt1}
            v_mul_u32_u24 v{vt2}, {2752 - 192}, v{vt1}
            v_lshl_add_u32 v{vt2}, v{vl}, 4, v{vt2}
            v_add_u32 v{vD+i}, s{stmp}, v{vt2}""")
    p("s_waitcnt lgkmcnt(0)")
    p.srd(sG, 4, 512 * 2752); p.srd(sU, 6, 512 * 2752); p.srd(sS, 8, WS_BYTES)

    def wdma(c):
        p(f"s_mov_b32 s{stmp}, {c*64*2752}")
        for m, srd in enumerate((sG, sU)):
            p(f"s_add_u32 m0, s{sm0}, {SLOT*(c % NSLOT) + m*12320}")
            for i in range(3):
                p(f"buffer_load_dwordx4 v{vD+i}, s[{srd}:{srd+3}], s{stmp} offen offset:{1024*i} lds", vm=("w", c))

    def xload(c):
        p(f"s_add_u32 s{stmp}, s{sXo}, {WS_XN + 4096*c}")
        for sp in range(4):
            p(f"buffer_load_dwordx4 {a(XF + 16*(c % 3) + 4*sp, 4)}, v{vF}, s[{sS}:{sS+3}], s{stmp} offen offset:{1024*sp}", vm=("x", c))

    for c in range(NSLOT):
        wdma(c)
        if c < 3:
            xload(c)
    p(f"""v_lshrrev_b32 v{vt0}, 5, v{vl}
        v_lshlrev_b32 v{vt0}, 3, v{vt0}
        v_bfe_u32 v{vt1}, v{vl}, 2, 2
        v_add_u32 v{vt0}, v{vt0}, v{vt1}
        v_mul_u32_u24 v{vt0}, 192, v{vt0}
        v_bfe_u32 v{vt1}, v{vl}, 4, 1
        v_mul_u32_u24 v{vt1}, 12320, v{vt1}
        v_add_u32 v{vt0}, v{vt0}, v{vt1}
        v_and_b32 v{vt1}, 3, v{vl}
        v_lshl_add_u32 v{vR}, v{vt1}, 3, v{vt0}
        v_add_u32 v{vR+1}, {2*SLOT}, v{vR}
        v_add_u32 v{vR+2}, {4*SLOT}, v{vR}""")

    def wread(ks, u):
        c, sp = divmod(ks, 4)
        sl = c % NSLOT
        off = SLOT * (sl & 1) + 3072 * sp + 32 * u
        r = WF + 24 * (ks & 1) + 4 * u
        p(f"ds_read_b64_tr_b16 {a(r, 2)}, v{vR + sl // 2} offset:{off}", lg=("w", ks, u))
        p(f"ds_read_b64_tr_b16 {a(r+2, 2)}, v{vR + sl // 2} offset:{off + 768}", lg=("w", ks, u))

    p.wait(vm=("w", 0))
    p("s_barrier")
    ts.mark()
    for u in range(6):
        wread(0, u)
    for ks in range(32):
        c, sp = divmod(ks, 4)
        if sp == 0:
            p.wait(vm=("x", c))
        if sp == 3 and c < 7:
            p.wait(vm=("w", c + 1))
            p("s_barrier")
            if 1 <= c <= 8 - NSLOT:
                wdma(c - 1 + NSLOT)
        for u in range(6):
            p.wait(lg=("w", ks, u))
            acc = v(ACC + 16 * u, 16)
            p(mfma(acc, a(WF + 24 * (ks & 1) + 4 * u, 4), a(XF + 16 * (c % 3) + 4 * sp, 4), "0" if ks == 0 else acc))
            if ks < 31:
                wread(ks + 1, u)
        if sp == 3 and c + 3 < 8:
            xload(c + 3)
    ts.mark()
    p(f"""s_mul_i32 s{sHo}, s{sT}, 86
        s_mul_i32 s{stmp}, s{ssl}, 6
        s_add_u32 s{sHo}, s{sHo}, s{stmp}
        s_lshl_b32 s{sHo}, s{sHo}, 10
        s_add_u32 s{sHo}, s{sHo}, {WS_H}
        s_add_u32 s{stmp}, s{sHo}, 4096""")
    for u in range(6):
        A = ACC + 16 * u
        if u == 2:
            p(f"s_cmp_eq_u32 s{ssl}, 14\ns_cbranch_scc1 gu_done")
        for r in range(8):
            p(f"v_max_f32 v{A+r}, 0, v{A+r}")
        for r in range(8):
            p(f"v_mul_f32 v{A+r}, v{A+r}, v{A+8+r}")
        for k in range(4):
            p(f"v_cvt_pk_bf16_f32 v{A+k}, v{A+2*k}, v{A+2*k+1}")
        p(f"buffer_store_dwordx4 {v(A, 4)}, v{vF}, s[{sS}:{sS+3}], s{sHo if u < 4 else stmp} offen offset:{1024*(u % 4)}")
    p.label("gu_done")
    ts.flush(sS, f"s{sw}", 2)
    p.label("gu_exit")
    p("s_endpgm")
    return (p, 128, 128), ("gu_kernel", 240, 256, LDS_GU)


def build_dn(prof=False):
    p = Prog("dn_kernel")
    ts = Stamps(p, prof, 3, 4)
    sW, sX, sS = 12, 16, 20
    sw, sT, snt, stmp, sm0, sWo, sHo, sHmax = 3, 24, 25, 26, 27, 28, 29, 30
    vl, vt0, vt1 = 1, 2, 3
    vD, vR, vF, vRed, vXa = 8, 10, 12, 13, 14
    ACC = 32
    HF, WF = 0, 64
    HR = 8
    ts.mark()
    p("s_load_dwordx2 s[4:5], s[0:1], 48\ns_load_dwordx2 s[6:7], s[0:1], 0\ns_load_dwordx2 s[8:9], s[0:1], 72")
    p("s_cmp_ge_u32 s2, 256\ns_cbranch_scc1 dn_exit")
    p(f"v_lshrrev_b32 v{vt0}, 6, v0\nv_and_b32 v{vl}, 63, v0\nv_readfirstlane_b32 s{sw}, v{vt0}")
    p(f"""s_and_b32 s{sT}, s2, 7
        s_lshl_b32 s{sT}, s{sT}, 2
        s_bfe_u32 s{stmp}, s2, 0x20003
        s_add_u32 s{sT}, s{sT}, s{stmp}
        s_lshl_b32 s{sT}, s{sT}, 1
        s_lshr_b32 s{snt}, s2, 5
        s_mul_i32 s{sm0}, s{sw}, {DN_RING*2048}
        s_mul_i32 s{sWo}, s{sw}, {22*16*1024}
        s_lshl_b32 s{stmp}, s{snt}, 7
        s_add_u32 s{sWo}, s{sWo}, s{stmp}
        s_mul_i32 s{sHmax}, s{sT}, {86*1024}
        s_add_u32 s{sHmax}, s{sHmax}, {WS_H}
        s_mul_i32 s{stmp}, s{sw}, {22*1024}
        s_add_u32 s{sHo}, s{sHmax}, s{stmp}
        s_add_u32 s{sHmax}, s{sHmax}, {85*1024}
        v_lshlrev_b32 v{vF}, 4, v{vl}
        v_add_u32 v{vF+3}, {86*1024}, v{vF}""")
    w128_dma_addr(p, vD, vl, vt0, vt1)
    p(f"v_add_u32 v{vD+1}, 7168, v{vD}")
    p("s_waitcnt lgkmcnt(0)")
    p.srd(sW, 4, 1376 * 1024); p.srd(sX, 6, 2 * MB); p.srd(sS, 8, WS_BYTES)

    def wdma(k):
        p(f"s_add_u32 m0, s{sm0}, {2048*(k % DN_RING)}\ns_add_u32 s{stmp}, s{sWo}, {k*16*1024}")
        for i in range(2):
            p(f"buffer_load_dwordx4 v{vD+i}, s[{sW}:{sW+3}], s{stmp} offen offset:{1024*i} lds", vm=("w", k))

    def hload(k):
        p(f"s_add_u32 s{stmp}, s{sHo}, {1024*k}")
        if k >= 20:
            p(f"s_min_u32 s{stmp}, s{stmp}, s{sHmax}")
        for tt in range(2):
            p(f"buffer_load_dwordx4 {a(HF + 8*(k % HR) + 4*tt, 4)}, v{vF + 3*tt}, s[{sS}:{sS+3}], s{stmp} offen", vm=("h", k))

    for k in range(HR):
        wdma(k); hload(k)
    tr_addr_perm(p, vR, vl, vt0, vt1, 7)
    p(f"v_add_u32 v{vR}, s{sm0}, v{vR}\nv_xor_b32 v{vR+1}, 64, v{vR}")

    def wread(k):
        for nt in range(2):
            r = WF + 8 * (k & 1) + 4 * nt
            off = 2048 * (k % DN_RING)
            p(f"ds_read_b64_tr_b16 {a(r, 2)}, v{vR+nt} offset:{off}", lg=("w", k))
            p(f"ds_read_b64_tr_b16 {a(r+2, 2)}, v{vR+nt} offset:{off + 1024}", lg=("w", k))

    p.wait(vm=("w", 0))
    ts.mark()
    wread(0)
    for k in range(22):
        if k + 1 < 22:
            p.wait(vm=("w", k + 1))
            wread(k + 1)
        p.wait(vm=("h", k), lg=("w", k))
        for tt in range(2):
            for nt in range(2):
                acc = v(ACC + 32 * tt + 16 * nt, 16)
                p(mfma(acc, a(WF + 8 * (k & 1) + 4 * nt, 4), a(HF + 8 * (k % HR) + 4 * tt, 4), "0" if k == 0 else acc))
        if k + HR < 22:
            wdma(k + HR); hload(k + HR)
    ts.mark()
    p(f"""v_and_b32 v{vt0}, 31, v{vl}
        v_lshlrev_b32 v{vt0}, 10, v{vt0}
        v_lshrrev_b32 v{vt1}, 5, v{vl}
        v_lshl_add_u32 v{vXa}, v{vt1}, 5, v{vt0}
        s_lshr_b32 s{stmp}, s{sw}, 1
        s_add_u32 s{stmp}, s{stmp}, s{sT}
        s_lshl_b32 s{sHo}, s{stmp}, 15
        s_lshl_b32 s{stmp}, s{snt}, 1
        s_and_b32 s{sWo}, s{sw}, 1
        s_add_u32 s{stmp}, s{stmp}, s{sWo}
        s_lshl_b32 s{stmp}, s{stmp}, 6
        s_add_u32 s{sHo}, s{sHo}, s{stmp}""")
    XR = 16
    for i in range(2):
        p(f"buffer_load_dwordx4 {v(XR + 4*i, 4)}, v{vXa}, s[{sX}:{sX+3}], s{sHo} offen offset:{16*i}", vm="x")
    p("s_barrier")
    p(f"s_lshl_b32 s{stmp}, s{sw}, 14\nv_add_u32 v{vRed}, s{stmp}, v{vF}")
    for q in range(4):
        for i in range(4):
            p(f"ds_write_b128 v{vRed}, {v(ACC + 16*q + 4*i, 4)} offset:{4096*q + 1024*i}")
    p("s_waitcnt lgkmcnt(0)\ns_barrier")
    p.lg = []
    p(f"s_lshl_b32 s{stmp}, s{sw}, 12\nv_add_u32 v{vRed}, s{stmp}, v{vF}")
    for src in range(4):
        for i in range(4):
            p(f"ds_read_b128 {v(ACC + 16*src + 4*i, 4)}, v{vRed} offset:{16384*src + 1024*i}", lg=src)
    for src in range(1, 4):
        p.wait(lg=src)
        for r in range(16):
            p(f"v_add_f32 v{ACC+r}, v{ACC+r}, v{ACC + 16*src + r}")
    p.wait(vm="x")
    for k in range(8):
        p(f"""v_lshlrev_b32 v{vt0}, 16, v{XR+k}
            v_and_b32 v{vt1}, 0xffff0000, v{XR+k}
            v_add_f32 v{ACC+2*k}, v{ACC+2*k}, v{vt0}
            v_add_f32 v{ACC+2*k+1}, v{ACC+2*k+1}, v{vt1}""")
    p(f"""s_lshl_b32 s{stmp}, s2, 2
        s_add_u32 s{stmp}, s{stmp}, s{sw}
        s_lshl_b32 s{stmp}, s{stmp}, 12
        s_add_u32 s{stmp}, s{stmp}, {WS_Y}""")
    for i in range(4):
        p(f"buffer_store_dwordx4 {v(ACC + 4*i, 4)}, v{vF}, s[{sS}:{sS+3}], s{stmp} offen offset:{1024*i}")
    ts.flush(sS, f"s{sw}", 2)
    p.label("dn_exit")
    p("s_endpgm")
    return (p, 128, 128), ("dn_kernel", 256, 256, LDS_DN)


def build_out(prof=False):
    p = Prog("out_kernel")
    ts = Stamps(p, prof, 4, 4)
    sW, sO, sS = 12, 16, 20
    sw, sT, snt, stmp, sm0, sWo, sOo = 3, 24, 25, 26, 27, 28, 29
    vl, vt0, vt1 = 1, 2, 3
    vD, vR, vF, vOR, vOut = 8, 10, 12, 13, 14
    ACC, OF, WF = 16, 32, 48
    ts.mark()
    p("s_load_dwordx2 s[4:5], s[0:1], 16\ns_load_dwordx2 s[6:7], s[0:1], 56\ns_load_dwordx2 s[8:9], s[0:1], 72")
    p("s_cmp_ge_u32 s2, 256\ns_cbranch_scc1 out_exit")
    p(f"v_lshrrev_b32 v{vt0}, 6, v0\nv_and_b32 v{vl}, 63, v0\nv_readfirstlane_b32 s{sw}, v{vt0}")
    p(f"""s_and_b32 s{sT}, s2, 7
        s_lshl_b32 s{sT}, s{sT}, 2
        s_bfe_u32 s{stmp}, s2, 0x20003
        s_add_u32 s{sT}, s{sT}, s{stmp}
        s_lshl_b32 s{sT}, s{sT}, 1
        s_lshr_b32 s{stmp}, s{sw}, 1
        s_add_u32 s{sT}, s{sT}, s{stmp}
        s_lshr_b32 s{snt}, s2, 5
        s_lshl_b32 s{sWo}, s{sw}, 15
        s_lshl_b32 s{stmp}, s{snt}, 7
        s_add_u32 s{sWo}, s{sWo}, s{stmp}
        s_lshl_b32 s{sOo}, s{sT}, 15
        s_and_b32 s{stmp}, s{sw}, 1
        s_lshl_b32 s{stmp}, s{stmp}, 12
        s_add_u32 s{sOo}, s{sOo}, s{stmp}
        s_add_u32 s{sOo}, s{sOo}, {WS_O}
        s_lshl_b32 s{sm0}, s{sw}, 12
        v_lshlrev_b32 v{vF}, 4, v{vl}""")
    w128_dma_addr(p, vD, vl, vt0, vt1)
    p(f"v_add_u32 v{vD+1}, 7168, v{vD}")
    p("s_waitcnt lgkmcnt(0)")
    p.srd(sW, 4, 512 * 1024); p.srd(sO, 6, 2 * MB); p.srd(sS, 8, WS_BYTES)
    for c in range(4):
        p(f"s_add_u32 m0, s{sm0}, {32768*c}\ns_add_u32 s{stmp}, s{sOo}, {8192*c}")
        for i in range(4):
            p(f"buffer_load_dwordx4 v{vF}, s[{sS}:{sS+3}], s{stmp} offen offset:{1024*i} lds", vm=c)
        for k in range(2):
            p(f"s_add_u32 m0, s{sm0}, {32768*c + 16384 + 2048*k}\ns_add_u32 s{stmp}, s{sWo}, {131072*c + 16384*k}")
            for i in range(2):
                p(f"buffer_load_dwordx4 v{vD+i}, s[{sW}:{sW+3}], s{stmp} offen offset:{1024*i} lds", vm=c)
        if c == 0:
            p(f"""s_lshl_b32 s{stmp}, s2, 2
                s_add_u32 s{stmp}, s{stmp}, s{sw}
                s_lshl_b32 s{stmp}, s{stmp}, 12
                s_add_u32 s{stmp}, s{stmp}, {WS_Y}""")
            for i in range(4):
                p(f"buffer_load_dwordx4 {v(ACC + 4*i, 4)}, v{vF}, s[{sS}:{sS+3}], s{stmp} offen offset:{1024*i}", vm=c)
    tr_addr_perm(p, vR, vl, vt0, vt1, 7)
    p(f"""s_and_b32 s{stmp}, s{sw}, 1
        s_lshl_b32 s{stmp}, s{stmp}, 6
        v_xor_b32 v{vR}, s{stmp}, v{vR}
        v_add_u32 v{vR}, 16384, v{vR}
        v_add_u32 v{vR+1}, 0x10000, v{vR}
        s_lshr_b32 s{stmp}, s{sw}, 1
        s_lshl_b32 s{stmp}, s{stmp}, 13
        v_add_u32 v{vOR}, s{stmp}, v{vF}
        v_add_u32 v{vOut+1}, 0x10000, v{vOR}
        v_and_b32 v{vt0}, 31, v{vl}
        v_lshlrev_b32 v{vt0}, 10, v{vt0}
        v_lshrrev_b32 v{vt1}, 5, v{vl}
        v_lshl_add_u32 v{vOut}, v{vt1}, 5, v{vt0}
        s_lshl_b32 s{sOo}, s{sT}, 15
        s_lshl_b32 s{stmp}, s{snt}, 1
        s_and_b32 s{sWo}, s{sw}, 1
        s_add_u32 s{stmp}, s{stmp}, s{sWo}
        s_lshl_b32 s{stmp}, s{stmp}, 6
        s_add_u32 s{sOo}, s{sOo}, s{stmp}""")

    def read(ks):
        c, k = divmod(ks, 8)
        base = 32768 * (c & 1)
        b = ks % 4
        p(f"ds_read_b128 {v(OF + 4*b, 4)}, v{vOR if c < 2 else vOut+1} offset:{base + 1024*k}", lg=ks)
        p(f"ds_read_b64_tr_b16 {v(WF + 4*b, 2)}, v{vR + c // 2} offset:{base + 2048*k}", lg=ks)
        p(f"ds_read_b64_tr_b16 {v(WF + 4*b + 2, 2)}, v{vR + c // 2} offset:{base + 2048*k + 1024}", lg=ks)

    def sync(c):
        p.wait(vm=c)
        p("s_barrier")

    sync(0)
    ts.mark()
    for ks in range(3):
        read(ks)
    for ks in range(32):
        if ks + 3 < 32:
            if (ks + 3) % 8 == 0:
                sync((ks + 3) // 8)
            read(ks + 3)
        p.wait(lg=ks)
        p(mfma(v(ACC, 16), v(WF + 4 * (ks % 4), 4), v(OF + 4 * (ks % 4), 4), v(ACC, 16)))
    ts.mark()
    for k in range(8):
        p(f"v_cvt_pk_bf16_f32 v{OF+k}, v{ACC+2*k}, v{ACC+2*k+1}")
    for i in range(2):
        p(f"buffer_store_dwordx4 {v(OF + 4*i, 4)}, v{vOut}, s[{sO}:{sO+3}], s{sOo} offen offset:{16*i}")
    ts.flush(sS, f"s{sw}", 2)
    p.label("out_exit")
    p("s_endpgm")
    return (p, 64, 0), ("out_kernel", 256, 256, 131072)
```

```python
from common import *

LDS_QKV = 131072 + 24576


def build(prof=False):
    p = Prog("qkv_kernel")
    ts = Stamps(p, prof, 0, 4)
    sX, sW, sS = 12, 16, 20
    sw, sT, sj, srot, sm0x, sm0w, sone, stmp = 3, 24, 25, 26, 27, 28, 29, 30
    sXo, sWo = 32, 40
    vl, vt0, vt1, vt2 = 1, 2, 3, 4
    vX, vW, vXR, vWR = 8, 12, 14, 18
    vS, vA, vB = 22, 26, 27
    vT = 28
    X, WF, ACC = 48, 176, 208
    ts.mark()
    p("s_load_dwordx4 s[4:7], s[0:1], 0\ns_load_dwordx2 s[8:9], s[0:1], 72")
    p("s_cmp_ge_u32 s2, 256\ns_cbranch_scc1 qkv_exit")
    p(f"v_lshrrev_b32 v{vt0}, 6, v0\nv_and_b32 v{vl}, 63, v0\nv_readfirstlane_b32 s{sw}, v{vt0}")
    p(f"""s_and_b32 s{stmp}, s2, 3
        s_lshl_b32 s{sT}, s{stmp}, 2
        s_bfe_u32 s{stmp}, s2, 0x20003
        s_add_u32 s{sT}, s{sT}, s{stmp}
        s_lshl_b32 s{sT}, s{sT}, 2
        s_add_u32 s{sT}, s{sT}, s{sw}
        s_bfe_u32 s{sj}, s2, 0x10002
        s_lshl_b32 s{sj}, s{sj}, 3
        s_lshr_b32 s{stmp}, s2, 5
        s_add_u32 s{sj}, s{sj}, s{stmp}
        s_lshr_b32 s{srot}, s{sj}, 1
        s_lshl_b32 s{sm0x}, s{sw}, 15
        s_mul_i32 s{sm0w}, s{sw}, 3072
        s_add_u32 s{sm0w}, s{sm0w}, 131072
        s_mov_b32 s{sone}, 0x3f803f80""")
    for c in range(8):
        p(f"""s_add_u32 s{stmp}, s{srot}, {c}
            s_and_b32 s{stmp}, s{stmp}, 7
            s_mul_i32 s{sWo+c}, s{stmp}, 196608
            s_lshl_b32 s{stmp}, s{stmp}, 7
            s_lshl_b32 s{sXo+c}, s{sT}, 15
            s_add_u32 s{sXo+c}, s{sXo+c}, s{stmp}""")
    p(f"""v_lshrrev_b32 v{vt0}, 4, v{vl}
        v_and_b32 v{vt1}, 7, v{vl}
        v_xor_b32 v{vt0}, v{vt0}, v{vt1}
        v_lshlrev_b32 v{vt0}, 4, v{vt0}
        v_lshrrev_b32 v{vt1}, 3, v{vl}
        v_lshl_add_u32 v{vX}, v{vt1}, 10, v{vt0}
        v_xor_b32 v{vX+1}, 64, v{vX}
        v_add_u32 v{vX+2}, {2*7168}, v{vX}
        v_add_u32 v{vX+3}, {3*7168}, v{vX+1}
        v_add_u32 v{vX+1}, 7168, v{vX+1}""")
    p("s_waitcnt lgkmcnt(0)")
    p.srd(sX, 4, 2 * MB); p.srd(sW, 6, 512 * 3072); p.srd(sS, 8, WS_BYTES)
    for c in range(8):
        p(f"s_add_u32 m0, s{sm0x}, {4096*c}")
        for i in range(4):
            p(f"buffer_load_dwordx4 v{vX+i}, s[{sX}:{sX+3}], s{sXo+c} offen offset:{1024*i} lds", vm=("x", c))
    p(f"""s_lshl_b32 s{stmp}, s{sw}, 4
        v_lshrrev_b32 v{vt0}, 2, v{vl}
        v_add_u32 v{vt0}, s{stmp}, v{vt0}
        v_mul_u32_u24 v{vt0}, 3072, v{vt0}
        v_and_b32 v{vt1}, 3, v{vl}
        v_lshl_add_u32 v{vt0}, v{vt1}, 4, v{vt0}
        s_lshl_b32 s{stmp}, s{sj}, 6
        v_add_u32 v{vW}, s{stmp}, v{vt0}""")

    def wdma(c):
        if c < 2:
            p(f"s_add_u32 m0, s{sm0w}, {12288*c}")
        else:
            p(f"s_add_u32 m0, s{sm0x}, {4096*(c-2)}")
        for m in range(3):
            p(f"buffer_load_dwordx4 v{vW}, s[{sW}:{sW+3}], s{sWo+c} offen offset:{1024*m} lds", vm=("w", c))
    wdma(0); wdma(1)
    p(f"""v_and_b32 v{vt0}, 31, v{vl}
        v_lshrrev_b32 v{vt1}, 5, v{vl}
        v_bfe_u32 v{vt2}, v{vl}, 1, 3
        v_xor_b32 v{vt1}, v{vt1}, v{vt2}
        v_lshlrev_b32 v{vt1}, 4, v{vt1}
        v_lshl_add_u32 v{vt0}, v{vt0}, 7, v{vt1}
        v_add_u32 v{vXR}, s{sm0x}, v{vt0}
        v_xor_b32 v{vXR+1}, 32, v{vXR}
        v_xor_b32 v{vXR+2}, 64, v{vXR}
        v_xor_b32 v{vXR+3}, 96, v{vXR}""")
    p(f"""v_lshrrev_b32 v{vt0}, 5, v{vl}
        v_lshlrev_b32 v{vt0}, 9, v{vt0}
        v_bfe_u32 v{vt1}, v{vl}, 2, 2
        v_lshl_add_u32 v{vt0}, v{vt1}, 6, v{vt0}
        v_bfe_u32 v{vt1}, v{vl}, 4, 1
        v_lshl_add_u32 v{vt0}, v{vt1}, 5, v{vt0}
        v_and_b32 v{vt1}, 3, v{vl}
        v_lshl_add_u32 v{vWR}, v{vt1}, 3, v{vt0}
        v_add_u32 v{vWR+1}, 0x10000, v{vWR}
        v_add_u32 v{vWR+2}, 0x20000, v{vWR}""")
    for i in range(4):
        p(f"v_mov_b32 v{vS+i}, 0")

    def stats(c):
        for d in range(16):
            r = X + 16 * c + d
            p(f"v_dot2_f32_bf16 v{vS + (d & 1)}, v{r}, s{sone}, v{vS + (d & 1)}")
            p(f"v_dot2_f32_bf16 v{vS + 2 + (d & 1)}, v{r}, v{r}, v{vS + 2 + (d & 1)}")

    for c in range(8):
        p.wait(vm=("x", c))
        if c == 0:
            ts.mark()
        for sp in range(4):
            p(f"ds_read_b128 {v(X + 16*c + 4*sp, 4)}, v{vXR+sp} offset:{4096*c}", lg=("x", c))
        if c > 0:
            stats(c - 1)
        p.wait(lg=("x", c))
        if c + 2 < 8:
            wdma(c + 2)
    ts.mark()
    stats(7)

    def wread(ks, m):
        c, sp = divmod(ks, 4)
        addr = (131072 + 12288 * c + 3072 * sp if c < 2 else 32768 * sp + 4096 * (c - 2)) + 1024 * m
        b, off = divmod(addr, 65536)
        r = WF + 12 * (ks & 1) + 4 * m
        p(f"ds_read_b64_tr_b16 {v(r, 2)}, v{vWR+b} offset:{off}", lg=("w", ks))
        p(f"ds_read_b64_tr_b16 {v(r+2, 2)}, v{vWR+b} offset:{off+256}", lg=("w", ks))

    p.wait(vm=("w", 1))
    p("s_barrier")
    for m in range(3):
        wread(0, m)
    p(f"""v_add_f32 v{vS}, v{vS}, v{vS+1}
        v_add_f32 v{vS+2}, v{vS+2}, v{vS+3}
        v_mov_b32 v{vS+1}, v{vS}
        v_mov_b32 v{vS+3}, v{vS+2}
        v_permlane32_swap_b32 v{vS}, v{vS+1}
        v_permlane32_swap_b32 v{vS+2}, v{vS+3}
        v_add_f32 v{vS}, v{vS}, v{vS+1}
        v_add_f32 v{vS+2}, v{vS+2}, v{vS+3}
        v_mul_f32 v{vS}, {f32hex(1/512)}, v{vS}
        v_mul_f32 v{vS+2}, {f32hex(1/512)}, v{vS+2}
        v_fma_f32 v{vS+2}, -v{vS}, v{vS}, v{vS+2}
        v_max_f32 v{vS+2}, 0, v{vS+2}
        v_add_f32 v{vS+2}, {f32hex(1e-5)}, v{vS+2}
        v_rsq_f32 v{vA}, v{vS+2}
        v_mul_f32 v{vB}, v{vS}, v{vA}""")

    def norm_ops(ks):
        ops = []
        for d in range(4):
            r = X + 4 * ks + d
            t = vT + 2 * d
            ops.append([f"v_lshlrev_b32 v{t}, 16, v{r}", f"v_and_b32 v{t+1}, 0xffff0000, v{r}",
                        f"v_fma_f32 v{t}, v{t}, v{vA}, -v{vB}", f"v_fma_f32 v{t+1}, v{t+1}, v{vA}, -v{vB}",
                        f"v_cvt_pk_bf16_f32 v{r}, v{t}, v{t+1}"])
        return [o for g in ops for o in g]

    for o in norm_ops(0):
        p(o)
    p(f"""v_lshlrev_b32 v{vX}, 4, v{vl}
        s_lshl_b32 s{sXo}, s{sT}, 5
        s_lshl_b32 s{stmp}, s{srot}, 2
        s_add_u32 s{sXo}, s{sXo}, s{stmp}
        s_lshl_b32 s{sXo}, s{sXo}, 10""")
    for ks in range(32):
        nxt = norm_ops(ks + 1) if ks < 31 else []
        cuts = [nxt[0:7], nxt[7:14], nxt[14:20]]
        if ks < 31 and (ks + 1) % 8 == 0:
            p.wait(vm=("w", (ks + 1) // 4 + 1))
            p("s_barrier")
        p.wait(lg=("w", ks))
        xf = v(X + 4 * ks, 4)
        for m in range(3):
            wf = v(WF + 12 * (ks & 1) + 4 * m, 4)
            acc = v(ACC + 16 * m, 16)
            c_in = "0" if ks == 0 else acc
            p(mfma(acc, wf, xf, c_in) if m < 2 else mfma(acc, xf, wf, c_in))
            if ks < 31:
                wread(ks + 1, m)
            for o in cuts[m]:
                p(o)
        if ks == 3:
            p(f"s_bitcmp1_b32 s{sj}, 0\ns_cbranch_scc1 qkv_noxn")
            for sp in range(4):
                p(f"buffer_store_dwordx4 {v(X + 4*sp, 4)}, v{vX}, s[{sS}:{sS+3}], s{sXo} offen offset:{1024*sp}", vm="skip")
            p.label("qkv_noxn")
            p.vm = [t for t in p.vm if t != "skip"]
    ts.mark()
    p(f"""s_lshl_b32 s{stmp}, s{sj}, 7
        s_add_u32 s{stmp}, s{stmp}, s{sT}
        s_lshl_b32 s{stmp}, s{stmp}, 10
        s_add_u32 s{sXo}, s{stmp}, {WS_Q}
        s_add_u32 s{sXo+1}, s{stmp}, {WS_Q + 65536}
        s_add_u32 s{sXo+2}, s{stmp}, {WS_K}
        s_add_u32 s{sXo+3}, s{stmp}, {WS_K + 65536}
        s_add_u32 s{sXo+4}, s{stmp}, {WS_V}
        s_mov_b32 s{sone}, {f32hex(QSCALE)}
        v_bfe_u32 v{vt0}, v{vl}, 4, 1
        v_lshlrev_b32 v{vt0}, 16, v{vt0}
        v_lshrrev_b32 v{vt1}, 5, v{vl}
        v_lshl_add_u32 v{vt0}, v{vt1}, 8, v{vt0}
        v_and_b32 v{vt1}, 15, v{vl}
        v_lshl_add_u32 v{vX+1}, v{vt1}, 4, v{vt0}""")
    for r in range(16):
        p(f"v_mul_f32 v{ACC+r}, s{sone}, v{ACC+r}")
    for m in range(3):
        for hf in range(2):
            d = X + 8 * m + 4 * hf
            for k in range(4):
                r = ACC + 16 * m + 8 * hf + 2 * k
                p(f"v_cvt_pk_bf16_f32 v{d+k}, v{r}, v{r+1}")
            if m < 2:
                p(f"buffer_store_dwordx4 {v(d, 4)}, v{vX}, s[{sS}:{sS+3}], s{sXo + 2*m + hf} offen")
            else:
                p(f"buffer_store_dwordx4 {v(d, 4)}, v{vX+1}, s[{sS}:{sS+3}], s{sXo+4} offen offset:{512*hf}")
    ts.flush(sS, f"s{sw}", 2)
    p.label("qkv_exit")
    p("s_endpgm")
    return (p, 256, 0), ("qkv_kernel", 256, 256, LDS_QKV)
```

```python
import sys
from asm import finish, Prog
import k_qkv, k_attn, k_ffn

NAME = "parallel_sum__softmax_full_mha__glu_gated_reglu__prompt"


def header():
    ref = open(f"cdna_kernels/{NAME}.s.ref").read().split("\n")
    return [l for l in ref if l.startswith(";") and "@launch" not in l]


def empty():
    p = Prog("empty_kernel")
    p("s_endpgm")
    return (p, 8, 0), ("empty_kernel", 256, 256, 0)


def generate(variant="base", prof=False):
    parts = [k_qkv.build(prof), k_ffn.build_gu(prof), k_attn.build(prof), k_ffn.build_dn(prof), k_ffn.build_out(prof)]
    kernels = [x[0] for x in parts]
    launches = [x[1] for x in parts]
    if variant.startswith("empty"):
        e = empty()
        kernels.append(e[0])
        launches += [e[1]] * int(variant[5:])
    return finish(header(), kernels, launches)


if __name__ == "__main__":
    variant = sys.argv[1] if len(sys.argv) > 1 else "base"
    out = sys.argv[2] if len(sys.argv) > 2 else f"cdna_kernels/{NAME}.s"
    prof = len(sys.argv) > 3 and sys.argv[3] == "prof"
    open(out, "w").write(generate(variant, prof))
    print("wrote", out)
```

```python
from asm import Prog, v, a, s, mfma

MB = 1 << 20
WS_XN, WS_Q, WS_K, WS_V, WS_O, WS_H, WS_Y, WS_TS = 0, 2 * MB, 4 * MB, 6 * MB, 8 * MB, 10 * MB, 16 * MB, 24 * MB
WS_BYTES = 32 * MB
QSCALE = 0.25 * 1.4426950408889634
TS_BASE = 80


def f32hex(x):
    import struct
    return "0x%08x" % struct.unpack("<I", struct.pack("<f", x))[0]


class Stamps:
    def __init__(self, p, on, kidx, nwaves):
        self.p, self.on, self.kidx, self.n, self.nwaves = p, on, kidx, 0, nwaves

    names = None

    def mark(self, name=None):
        if not self.on or (name is not None and self.names is not None and name not in self.names):
            return
        assert self.n < 8
        op = "s_memtime" if self.on == "cyc" else "s_memrealtime"
        self.p(f"{op} s[{TS_BASE + 2*self.n}:{TS_BASE + 2*self.n + 1}]")
        self.n += 1

    def flush(self, srd, swave, vt):
        if not self.on:
            return
        p = self.p
        p("s_waitcnt vmcnt(0)")
        self.mark()
        p("s_waitcnt lgkmcnt(0)")
        p(f"s_mul_i32 s96, s2, {self.nwaves}\ns_add_u32 s96, s96, {swave}\ns_lshl_b32 s96, s96, 5")
        p(f"s_add_u32 s96, s96, {WS_TS + self.kidx * 0x40000}")
        p("s_mov_b64 exec, -1")
        p(f"v_mov_b32 v{vt}, 0")
        for i in range(self.n):
            p(f"v_mov_b32 v{vt+1}, s{TS_BASE + 2*i}")
            p(f"buffer_store_dword v{vt+1}, v{vt}, s[{srd}:{srd+3}], s96 offen offset:{4*i}")
            p("s_waitcnt vmcnt(0)")
```

```python
from common import *
from k_ffn import tr_addr_perm, w128_dma_addr

K = 1024
WS_F = 20 * MB
R1, R2 = 64 * K, 128 * K
SLOT = 24832
SLOTS = (R2, 59392, 59392 + SLOT, 0, SLOT, 59392, 59392 + SLOT, 0)
OX, RED_TILE = 108 * K, 2304
STAT, SYNC = 155904, 160256
RING = 13
LDS = 160 * K
SPIN = 1 << 15

sw, sX, sS, sW, sU, sO = 3, 24, 28, 32, 36, 40
stb, sj, srot, st, st2, sone, sm0x, scnt, sFl = 44, 45, 46, 47, 48, 49, 50, 51, 52
sXo, sWo = 54, 58
vl, vt0, vt1, vt2 = 1, 2, 3, 4
X = 128
CFG = dict(ma="bar0+bar1+kvend+bar7+loop0+loop1", mb="bar0+bar7+guend+hpoll+dnend+opoll", map="8x4", prioA=2, prioB1=0, prioB2=3, gu_first=5, hdepth=4, bnorm=(2, 3), prenorm=6, kvpre=3, touch=1, wpace=4)


def poll(p, name, srd, vaddr, soff, vtmp, val, first_issued=False):
    p(f"s_mov_b32 s{scnt}, {SPIN}")
    if first_issued:
        p(f"s_branch {name}_chk")
    p.label(name)
    p(f"buffer_load_dword v{vtmp}, v{vaddr}, s[{srd}:{srd+3}], {soff} offen sc1")
    p.label(name + "_chk")
    p(f"""s_waitcnt vmcnt(0)
        v_cmp_ne_u32 vcc, {val}, v{vtmp}
        s_cbranch_vccz {name}_ok
        s_sub_u32 s{scnt}, s{scnt}, 1
        s_cmp_lg_u32 s{scnt}, 0
        s_cbranch_scc1 {name}""")
    p.label(name + "_ok")
    p.vm = []


def set_flag(p, word_base, va, vd):
    p(f"""s_lshl_b32 s{st}, s{sw}, 2
        s_add_u32 s{st}, s{st}, s{sFl}
        v_mov_b32 v{va}, 0
        v_mov_b32 v{vd}, 1
        s_mov_b64 exec, 1
        buffer_store_dword v{vd}, v{va}, s[{sS}:{sS+3}], s{st} offen offset:{4*word_base} sc1
        s_mov_b64 exec, -1""", vm="flag")


def x_addr(p, vX, vXR, c0):
    for c in range(4):
        p(f"""s_add_u32 s{st}, s{srot}, {c0 + c}
            s_and_b32 s{st}, s{st}, 7
            s_lshl_b32 s{st}, s{st}, 7
            s_add_u32 s{sXo+c}, s{st2}, s{st}""")
    p(f"""v_lshrrev_b32 v{vt0}, 4, v{vl}
        v_and_b32 v{vt1}, 7, v{vl}
        v_xor_b32 v{vt0}, v{vt0}, v{vt1}
        v_lshlrev_b32 v{vt0}, 4, v{vt0}
        v_lshrrev_b32 v{vt1}, 3, v{vl}
        v_lshl_add_u32 v{vX}, v{vt1}, 10, v{vt0}
        v_xor_b32 v{vX+1}, 64, v{vX}
        v_add_u32 v{vX+2}, {2*7168}, v{vX}
        v_add_u32 v{vX+3}, {3*7168}, v{vX+1}
        v_add_u32 v{vX+1}, 7168, v{vX+1}""")


def x_dma(p, vX):
    for c in range(4):
        p(f"s_add_u32 m0, s{sm0x}, {4096*c}")
        for i in range(4):
            p(f"buffer_load_dwordx4 v{vX+i}, s[{sX}:{sX+3}], s{sXo+c} offen offset:{1024*i} lds", vm=("x", c))


def x_read_addr(p, vXR):
    p(f"""v_and_b32 v{vt0}, 31, v{vl}
        v_lshrrev_b32 v{vt1}, 5, v{vl}
        v_bfe_u32 v{vt2}, v{vl}, 1, 3
        v_xor_b32 v{vt1}, v{vt1}, v{vt2}
        v_lshlrev_b32 v{vt1}, 4, v{vt1}
        v_lshl_add_u32 v{vt0}, v{vt0}, 7, v{vt1}
        v_add_u32 v{vXR}, s{sm0x}, v{vt0}
        v_xor_b32 v{vXR+1}, 32, v{vXR}
        v_xor_b32 v{vXR+2}, 64, v{vXR}
        v_xor_b32 v{vXR+3}, 96, v{vXR}""")


def x_stats(p, ts, XB, vXR, vS, vA, vB, role, after_wait, after_stats):
    for i in range(4):
        p(f"v_mov_b32 v{vS+i}, 0")
    p(f"""s_lshl_b32 s{st}, s{sw}, 10
        s_add_u32 s{st}, s{st}, {STAT}
        v_lshl_add_u32 v{vB}, v{vl}, 3, s{st}""")

    def stats(c):
        for d in range(16):
            r = XB + 16 * c + d
            p(f"v_dot2_f32_bf16 v{vS + 2*(d & 1)}, v{r}, s{sone}, v{vS + 2*(d & 1)}")
            p(f"v_dot2_f32_bf16 v{vS + 1 + 2*(d & 1)}, v{r}, v{r}, v{vS + 1 + 2*(d & 1)}")

    for c in range(4):
        p.wait(vm=("x", c))
        after_wait(c)
        ts.mark(f"x{c}")
        for sp in range(4):
            p(f"ds_read_b128 {v(XB + 16*c + 4*sp, 4)}, v{vXR+sp} offset:{4096*c}", lg=("x", c))
        if c > 0:
            stats(c - 1)
        p.wait(lg=("x", c))
    stats(3)
    p(f"""v_add_f32 v{vS}, v{vS}, v{vS+2}
        v_add_f32 v{vS+1}, v{vS+1}, v{vS+3}
        ds_write_b64 v{vB}, {v(vS, 2)} offset:{512*role}""")
    after_stats()
    p(f"""s_waitcnt lgkmcnt(0)
        s_barrier
        ds_read_b64 {v(vS+2, 2)}, v{vB} offset:{512*(1-role)}
        s_waitcnt lgkmcnt(0)""")
    p.lg = []
    ts.mark("bar0")
    p(f"""v_add_f32 v{vS}, v{vS}, v{vS+2}
        v_add_f32 v{vS+2}, v{vS+1}, v{vS+3}
        v_mov_b32 v{vS+1}, v{vS}
        v_mov_b32 v{vS+3}, v{vS+2}
        v_permlane32_swap_b32 v{vS}, v{vS+1}
        v_permlane32_swap_b32 v{vS+2}, v{vS+3}
        v_add_f32 v{vS}, v{vS}, v{vS+1}
        v_add_f32 v{vS+2}, v{vS+2}, v{vS+3}
        v_mul_f32 v{vS}, {f32hex(1/512)}, v{vS}
        v_mul_f32 v{vS+2}, {f32hex(1/512)}, v{vS+2}
        v_fma_f32 v{vS+2}, -v{vS}, v{vS}, v{vS+2}
        v_max_f32 v{vS+2}, 0, v{vS+2}
        v_add_f32 v{vS+2}, {f32hex(1e-5)}, v{vS+2}
        v_rsq_f32 v{vA}, v{vS+2}
        v_mul_f32 v{vB}, v{vS}, v{vA}""")


def norm_ops(ks, vT, vA, vB):
    ops = []
    for d in range(4):
        r, t = X + 4 * ks + d, vT + 2 * d
        ops += [f"v_lshlrev_b32 v{t}, 16, v{r}", f"v_and_b32 v{t+1}, 0xffff0000, v{r}",
                f"v_fma_f32 v{t}, v{t}, v{vA}, -v{vB}", f"v_fma_f32 v{t+1}, v{t+1}, v{vA}, -v{vB}",
                f"v_cvt_pk_bf16_f32 v{r}, v{t}, v{t+1}"]
    return ops


def prologue(p, ts, cfg):
    ts.mark()
    p("s_load_dwordx16 s[4:19], s[0:1], 0\ns_load_dwordx4 s[20:23], s[0:1], 64")
    p("s_cmp_ge_u32 s2, 256\ns_cbranch_scc1 fz_exit")
    p(f"v_lshrrev_b32 v{vt0}, 6, v0\nv_and_b32 v{vl}, 63, v0\nv_readfirstlane_b32 s{scnt}, v{vt0}")
    if cfg["map"] == "8x4":
        p(f"""s_and_b32 s{stb}, s2, 1
            s_lshl_b32 s{stb}, s{stb}, 3
            s_bfe_u32 s{st}, s2, 0x30003
            s_add_u32 s{stb}, s{stb}, s{st}
            s_bfe_u32 s{sj}, s2, 0x20001
            s_lshl_b32 s{sj}, s{sj}, 2
            s_lshr_b32 s{st}, s2, 6
            s_add_u32 s{sj}, s{sj}, s{st}
            s_lshl_b32 s{srot}, s{sj}, 1
            s_add_u32 s{srot}, s{srot}, s{stb}""")
    else:
        p(f"""s_and_b32 s{stb}, s2, 3
            s_lshl_b32 s{stb}, s{stb}, 2
            s_bfe_u32 s{st}, s2, 0x20003
            s_add_u32 s{stb}, s{stb}, s{st}
            s_bfe_u32 s{sj}, s2, 0x10002
            s_lshl_b32 s{sj}, s{sj}, 3
            s_lshr_b32 s{st}, s2, 5
            s_add_u32 s{sj}, s{sj}, s{st}
            s_lshl_b32 s{srot}, s{stb}, 1
            s_add_u32 s{srot}, s{srot}, s{sj}""")
    p(f"""s_and_b32 s{sw}, s{scnt}, 3
        s_lshl_b32 s{sm0x}, s{scnt}, 14
        s_lshl_b32 s{sFl}, s{stb}, 4
        s_add_u32 s{sFl}, s{sFl}, s{sj}
        s_lshl_b32 s{sFl}, s{sFl}, 7
        s_add_u32 s{sFl}, s{sFl}, {WS_F}
        s_lshl_b32 s{st2}, s{stb}, 2
        s_add_u32 s{st2}, s{st2}, s{sw}
        s_lshl_b32 s{st2}, s{st2}, 15
        s_mov_b32 s{sone}, 0x3f803f80
        s_cmp_ge_u32 s{scnt}, 4
        s_cbranch_scc1 fz_role_b""")


def build(prof=False, **kw):
    import fused_a, fused_b
    cfg = dict(CFG); cfg.update(kw)
    name = "parallel_sum__softmax_full_mha__glu_gated_reglu__prompt_kernel"
    p = Prog(name)
    ts = Stamps(p, prof, 0, 8)
    prologue(p, ts, cfg)
    ts.names = cfg["ma"].split("+")
    fused_a.role_a(p, ts, cfg)
    p.vm, p.lg, ts.n = [], [], 1
    ts.names = cfg["mb"].split("+")
    p.label("fz_role_b")
    fused_b.role_b(p, ts, cfg)
    p.label("fz_exit")
    p("s_endpgm")
    return (p, 256, 0), (name, 256, 512, LDS)
```

```python
from fused import *

vX, vW, vXR, vWR, vS, vA, vB, vF, vXN = 5, 9, 11, 15, 18, 22, 23, 24, 25
vT, WF, ACC = 28, 36, 68
T, P, Q, S, KV, O = 28, 36, 44, 60, 120, 192
NB = 6
sm0w, sOff, sEx, shead, sks = 66, 67, 68, 70, 71


def kv_lds(c, sp, m):
    return (R2 + 8192 * c + 2048 * sp if c < 3 else 16384 * sp + 2048 * (c - 3)) + 1024 * m


def q_lds(c, sp):
    return 16384 * sp + (10240 + 1024 * c if c < 6 else 1024 * (c - 6))


def role_a(p, ts, cfg):
    p(f"s_setprio {cfg['prioA']}")
    x_addr(p, vX, vXR, 0)
    p(f"""s_cmp_eq_u32 s{sw}, 0
        s_cselect_b32 s{st}, 0, 0x7fff0000
        v_lshlrev_b32 v{vF}, 4, v{vl}
        v_add_u32 v{vT}, s{st}, v{vF}
        v_mov_b32 v{vT+1}, 1""")
    for r in range(4):
        p(f"v_mov_b32 v{vT+4+r}, 0")
    p("s_waitcnt lgkmcnt(0)")
    p.srd(sS, 22, WS_BYTES); p.srd(sX, 4, 2 * MB)
    p(f"""s_mov_b64 exec, 0xff
        buffer_store_dwordx4 {v(vT+4, 4)}, v{vT}, s[{sS}:{sS+3}], s{sFl} offen sc1
        s_mov_b64 exec, -1""", vm="clr")
    x_dma(p, vX)
    p.srd(sW, 6, 512 * 3072); p.srd(sU, 20, 256)
    for c in range(8):
        p(f"""s_add_u32 s{st}, s{srot}, {c}
            s_and_b32 s{st}, s{st}, 7
            s_mul_i32 s{sWo+c}, s{st}, 196608""")
    p(f"""s_lshl_b32 s{st}, s{sw}, 4
        v_lshrrev_b32 v{vt0}, 2, v{vl}
        v_add_u32 v{vt0}, s{st}, v{vt0}
        v_mul_u32_u24 v{vt0}, 3072, v{vt0}
        v_and_b32 v{vt1}, 3, v{vl}
        v_lshl_add_u32 v{vt0}, v{vt1}, 4, v{vt0}
        s_lshl_b32 s{st}, s{sj}, 6
        v_add_u32 v{vW}, s{st}, v{vt0}
        v_add_u32 v{vW+1}, 1024, v{vW}
        s_lshl_b32 s{sm0w}, s{sw}, 11
        s_add_u32 s{sm0w}, s{sm0w}, {R2}""")

    def kvdma(c):
        p(f"s_add_u32 m0, s{sm0w}, {8192*c}" if c < 3 else f"s_add_u32 m0, s{sm0x}, {2048*(c-3)}")
        for m in range(2):
            p(f"buffer_load_dwordx4 v{vW+1}, s[{sW}:{sW+3}], s{sWo+c} offen offset:{1024*m} lds", vm=("kv", c))

    def qdma(c):
        p(f"s_add_u32 m0, s{sm0x}, {q_lds(c, 0)}")
        p(f"buffer_load_dwordx4 v{vW}, s[{sW}:{sW+3}], s{sWo+c} offen lds", vm=("q", c))

    x_read_addr(p, vXR)
    p(f"""v_lshrrev_b32 v{vt0}, 5, v{vl}
        v_lshlrev_b32 v{vt0}, 9, v{vt0}
        v_bfe_u32 v{vt1}, v{vl}, 2, 2
        v_lshl_add_u32 v{vt0}, v{vt1}, 6, v{vt0}
        v_bfe_u32 v{vt1}, v{vl}, 4, 1
        v_lshl_add_u32 v{vt0}, v{vt1}, 5, v{vt0}
        v_and_b32 v{vt1}, 3, v{vl}
        v_lshl_add_u32 v{vWR}, v{vt1}, 3, v{vt0}
        v_add_u32 v{vWR+1}, {R2}, v{vWR}
        s_add_u32 s{st}, s{sm0x}, {R1}
        v_add_u32 v{vXN}, s{st}, v{vF}""")

    def after_wait(c):
        if c == 3:
            p("s_barrier")

    def after_stats():
        p(f"""s_lshl_b32 s{st}, s{sj}, 4
            s_mov_b64 exec, 1
            buffer_atomic_add v{vT+1}, v{vT}, s[{sU}:{sU+3}], s{st} offen sc1
            s_mov_b64 exec, -1""", vm="cnt")
        for k in range(cfg["kvpre"]):
            kvdma(k)

    x_stats(p, ts, X, vXR, vS, vA, vB, 0, after_wait, after_stats)

    def lds_ref(addr):
        return (vWR + 1, addr - R2) if addr >= R2 else (vWR, addr)

    def wread(ks, m):
        b, off = lds_ref(kv_lds(ks // 4, ks % 4, m))
        r = WF + 8 * (ks % 4) + 4 * m
        p(f"ds_read_b64_tr_b16 {v(r, 2)}, v{b} offset:{off}", lg=("w", ks))
        p(f"ds_read_b64_tr_b16 {v(r+2, 2)}, v{b} offset:{off+256}", lg=("w", ks))

    PRE = cfg["prenorm"]
    dmas = [(kvdma, c) for c in range(cfg["kvpre"], 8)] + [(qdma, c) for c in range(6)]
    for ks in range(PRE):
        for o in norm_ops(ks, vT, vA, vB):
            p(o)
        f, c = dmas.pop(0)
        f(c)
    p.wait(vm=("kv", 1))
    p("s_barrier")
    ts.mark("bar1")
    for ks in range(2):
        wread(ks, 0); wread(ks, 1)
    for ks in range(32):
        nxt = norm_ops(ks + PRE, vT, vA, vB) if ks + PRE < 16 else []
        if ks < 30 and (ks + 2) % 8 == 0:
            p.wait(vm=("kv", (ks + 2) // 4 + 1))
            p("s_barrier")
            ts.mark(f"bar{(ks + 2) // 8 + 1}")
            if ks == 22:
                qdma(6); qdma(7)
        p.wait(lg=("w", ks))
        if ks >= 16:
            p.wait(lg=("xn", ks))
        xf = v(X + 4 * ks, 4)
        for m in range(2):
            wf, acc = v(WF + 8 * (ks % 4) + 4 * m, 4), v(ACC + 16 * m, 16)
            c_in = "0" if ks == 0 else acc
            p(mfma(acc, wf, xf, c_in) if m == 0 else mfma(acc, xf, wf, c_in))
            if ks + 2 < 32:
                wread(ks + 2, m)
            if m == 0 and 14 <= ks < 30:
                p(f"ds_read_b128 {v(X + 4*(ks+2), 4)}, v{vXN} offset:{1024*(ks-14)}", lg=("xn", ks + 2))
            if m == 1 and dmas:
                f, c = dmas.pop(0)
                f(c)
            for o in nxt[10 * m:10 * m + 10]:
                p(o)
    ts.mark("kvend")
    sKo, sVo = sXo, sXo + 2
    vV = vX
    p(f"""s_lshl_b32 s{st}, s{sj}, 5
        s_add_u32 s{st}, s{st}, s{stb}
        s_lshl_b32 s{st}, s{st}, 2
        s_add_u32 s{st}, s{st}, s{sw}
        s_lshl_b32 s{st}, s{st}, 10
        s_add_u32 s{sKo}, s{st}, {WS_K}
        s_add_u32 s{sKo+1}, s{st}, {WS_K + 65536}
        s_add_u32 s{sVo}, s{st}, {WS_V}
        v_lshrrev_b32 v{vt1}, 5, v{vl}
        v_lshlrev_b32 v{vt1}, 8, v{vt1}
        v_and_b32 v{vt0}, 15, v{vl}
        v_lshl_add_u32 v{vV}, v{vt0}, 4, v{vt1}
        v_bfe_u32 v{vt0}, v{vl}, 4, 1
        v_lshl_add_u32 v{vV+1}, v{vt0}, 16, v{vV}
        v_lshl_add_u32 v{vV+2}, v{vt0}, 10, v{vV}
        v_add_u32 v{vV+2}, s{sm0x}, v{vV+2}
        v_add_u32 v{vV+3}, s{sm0x}, v{vF}
        v_and_b32 v{vt0}, 15, v{vl}
        v_lshlrev_b32 v{vXR}, 4, v{vt0}""")
    for m in range(2):
        for hf in range(2):
            d = 60 + 8 * m + 4 * hf
            for k in range(4):
                r = ACC + 16 * m + 8 * hf + 2 * k
                p(f"v_cvt_pk_bf16_f32 v{d+k}, v{r}, v{r+1}")
            if m == 0:
                p(f"buffer_store_dwordx4 {v(d, 4)}, v{vF}, s[{sS}:{sS+3}], s{sKo+hf} offen sc1", vm="st")
            else:
                p(f"buffer_store_dwordx4 {v(d, 4)}, v{vV+1}, s[{sS}:{sS+3}], s{sVo} offen offset:{512*hf} sc1", vm="st")
    p(f"buffer_load_dword v{vXR+1}, v{vXR}, s[{sU}:{sU+3}], 0 offen sc1", vm="cntld")
    p.wait(vm=("q", 5), lg="all")
    p("s_barrier")
    ts.mark("bar5")

    def qread(ks):
        b, off = lds_ref(q_lds(ks // 4, ks % 4))
        r = WF + 4 * (ks % 6)
        p(f"ds_read_b64_tr_b16 {v(r, 2)}, v{b} offset:{off}", lg=("w", ks))
        p(f"ds_read_b64_tr_b16 {v(r+2, 2)}, v{b} offset:{off+256}", lg=("w", ks))

    QD, Q2 = 4, 76
    for ks in range(QD):
        qread(ks)
    ones = [f"v_mov_b32 v{KV + 12*b + 4 + r}, s{sone}" for b in range(NB) for r in range(8)]
    for ks in range(32):
        if ks + QD == 24:
            p.wait(vm=("q", 7))
            p("s_barrier")
        p.wait(lg=("w", ks))
        acc = v(ACC + 32 if ks % 2 == 0 else Q2, 16)
        p(mfma(acc, v(WF + 4 * (ks % 6), 4), v(X + 4 * ks, 4), "0" if ks < 2 else acc))
        if ks + QD < 32:
            qread(ks + QD)
        if ks < 2:
            p(f"ds_write_b128 v{vV+3}, {v(60 + 4*ks, 4)} offset:{4096 + 1024*ks}", lg="ex")
        elif ks < 4:
            p(f"ds_write_b128 v{vV+2}, {v(68 + 4*(ks-2), 4)} offset:{6144 + 512*(ks-2)}", lg="ex")
        if ks >= 18:
            for o in ones[4 * (ks - 18):4 * (ks - 18) + 4]:
                p(o)
    ts.mark("qend")
    p.wait(vm="st")
    ts.mark("stack")
    set_flag(p, 0, vt0, vt1)
    p(f"s_mov_b32 s{st}, {f32hex(QSCALE)}")
    for r in range(16):
        p(f"v_add_f32 v{ACC+32+r}, v{Q2+r}, v{ACC+32+r}")
    for r in range(16):
        p(f"v_mul_f32 v{ACC+32+r}, s{st}, v{ACC+32+r}")
    for hf in range(2):
        d = ACC + 32 + 4 * hf
        for k in range(4):
            p(f"v_cvt_pk_bf16_f32 v{d+k}, v{ACC + 32 + 8*hf + 2*k}, v{ACC + 32 + 8*hf + 2*k + 1}")
        p(f"ds_write_b128 v{vV+3}, {v(d, 4)} offset:{8192 + 1024*hf}", lg="ex")
    vK, vVg, vP, vQ, vVl = vF + 2, vF + 3, vXR + 2, vW, vW + 1
    p(f"""s_and_b32 s{shead}, s{sw}, 1
        s_lshr_b32 s{sks}, s{sw}, 1
        s_lshl_b32 s{st}, s{shead}, 10
        s_lshl_b32 s{st2}, s{sks}, 15
        s_add_u32 s{st}, s{st}, s{st2}
        v_add_u32 v{vQ}, s{st}, v{vF}
        v_add_u32 v{vVl}, s{st}, v{vV}
        v_xor_b32 v{vXN}, 0x8000, v{vQ}
        s_lshl_b32 s{st}, s{sj}, 1
        s_add_u32 s{shead}, s{shead}, s{st}
        s_lshl_b32 s{st}, s{shead}, 16
        s_add_u32 s{st2}, s{st}, {WS_K}
        v_add_u32 v{vK}, s{st2}, v{vF}
        s_add_u32 s{st2}, s{st}, {WS_V}
        v_add_u32 v{vVg}, s{st2}, v{vV}
        s_add_u32 s{sOff}, s{stb}, 1
        s_and_b32 s{sOff}, s{sOff}, 15
        s_lshl_b32 s{sOff}, s{sOff}, 1
        s_add_u32 s{sOff}, s{sOff}, s{sks}
        s_lshl_b32 s{sOff}, s{sOff}, 11
        s_mov_b32 s{sEx}, 0x0000ffff
        s_mov_b32 s{sEx+1}, 0x0000ffff
        v_bfe_u32 v{vt0}, v{vl}, 1, 4
        v_lshlrev_b32 v{vt0}, 11, v{vt0}
        v_and_b32 v{vt1}, 1, v{vl}
        v_lshl_add_u32 v{vt0}, v{vt1}, 2, v{vt0}
        s_lshl_b32 s{st}, s{sj}, 7
        s_lshl_b32 s{st2}, s{sks}, 3
        s_add_u32 s{st}, s{st}, s{st2}
        s_add_u32 s{st}, s{st}, {WS_F}
        v_add_u32 v{vP}, s{st}, v{vt0}""")
    p.wait(vm="cntld")
    p(f"v_cmp_ne_u32 vcc, 16, v{vXR+1}\ns_cbranch_vccz fa_cnt_skip")
    vm_keep = list(p.vm)
    poll(p, "fa_cnt", sU, vXR, "0", vXR + 1, 16)
    p.label("fa_cnt_skip")
    p.vm = vm_keep
    p.wait(lg="all")
    p("s_barrier")
    ts.mark("bar7")
    p(f"ds_read_b128 {v(KV, 4)}, v{vQ} offset:4096", lg="k0")
    for jj in range(4):
        p(f"ds_read_b128 {v(Q + 4*jj, 4)}, v{vXN if jj < 2 else vQ} offset:{8192 + 16384*(jj & 1)}", lg=("q", jj))
    p(f"ds_read_b128 {v(KV + 12, 4)}, v{vQ} offset:{4096 + 16384}", lg="v")
    p(f"s_mov_b64 exec, s[{sEx}:{sEx+1}]")
    for b in range(2):
        for f in range(2):
            p(f"ds_read_b128 {v(KV + 12*b + 4 + 4*f, 4)}, v{vVl} offset:{6144 + 16384*b + 512*f}", lg="v")
    p("s_mov_b64 exec, -1")
    p(f"buffer_load_dword v{vP+1}, v{vP}, s[{sS}:{sS+3}], 0 offen sc1", vm="poll")
    p.wait(lg=("q", 0))
    p(mfma(v(S, 16), v(KV, 4), v(Q, 4), "0"))
    p(f"""s_lshl_b32 s{st}, s{sw}, 2
        s_add_u32 s{st}, s{st}, {SYNC}
        v_mov_b32 v{vt0}, s{st}
        v_mov_b32 v{vt1}, 64""")
    p.wait(lg="all")
    p(f"ds_write_b32 v{vt0}, v{vt1}")

    def kvload(b):
        p(f"buffer_load_dwordx4 {v(KV + 12*b, 4)}, v{vK}, s[{sS}:{sS+3}], s{sOff} offen sc1", vm=("b", b))
        p(f"s_mov_b64 exec, s[{sEx}:{sEx+1}]")
        p(f"buffer_load_dwordx4 {v(KV + 12*b + 4, 4)}, v{vVg}, s[{sS}:{sS+3}], s{sOff} offen sc1", vm=("b", b))
        p(f"buffer_load_dwordx4 {v(KV + 12*b + 8, 4)}, v{vVg}, s[{sS}:{sS+3}], s{sOff} offen offset:512 sc1", vm=("b", b))
        p("s_mov_b64 exec, -1")

    def kvadv(b):
        if b % 2 == 0:
            return [f"s_add_u32 s{sOff}, s{sOff}, 1024"]
        return [f"s_add_u32 s{sOff}, s{sOff}, 3072", f"s_and_b32 s{sOff}, s{sOff}, 0xffff"]

    cprev = f"v_cvt_pk_bf16_f32 v{P + 7}, v{T + 14 % 6}, v{T + 14 % 6 + 1}"

    def tile(j, b, step0, extra):
        cur, nxt = S + 16 * (j & 1), S + 16 * ((j + 1) & 1)
        e = lambda k: f"v_exp_f32 v{T + k % 6}, v{cur + k}"
        c = lambda k: f"v_cvt_pk_bf16_f32 v{P + k // 2}, v{T + k % 6}, v{T + k % 6 + 1}"
        run = lambda ops: [o() if callable(o) else p(o) for o in ops]
        first = step0 and j == 0
        jp, bp = (j - 1) % 4, (b if j > 0 else (b - 1) % NB)
        jn, bn = (j + 1) % 4, (b if j < 3 else (b + 1) % NB)
        p(mfma(v(nxt, 16), v(KV + 12 * bn, 4), v(Q + 4 * jn, 4), "0"))
        run(extra[0])
        if not first:
            p(cprev)
        run((e(0), e(1), e(2), c(0), e(3), e(4), c(2)))
        if not first:
            p(mfma(v(O + 16 * jp, 16), v(KV + 12 * bp + 8, 4), v(P + 4, 4), v(O + 16 * jp, 16)))
        run(extra[1])
        run((e(5), e(6), c(4), e(7), e(8), c(6), e(9), e(10)))
        p(mfma(v(O + 16 * j, 16), v(KV + 12 * b + 4, 4), v(P, 4), "0" if step0 else v(O + 16 * j, 16)))
        run(extra[2])
        run((c(8), e(11), e(12), c(10), e(13), e(14), c(12), e(15)))

    def step(b, step0=False, tail=None):
        for j in range(4):
            extra = [[], [], []]
            if j == 0 and not step0:
                extra[1] = [lambda: kvload((b - 1) % NB)]
                extra[2] = kvadv((b - 1) % NB)[:1]
            if j == 1 and not step0:
                extra[0] = kvadv((b - 1) % NB)[1:]
            if j == 2 and not step0:
                extra[2] = [lambda: p.wait(vm=("b", (b + 1) % NB))]
            if j == 3 and tail:
                extra[1] = tail[:1]; extra[2] = tail[1:]
            tile(j, b, step0, extra)

    step(0, step0=True)
    ts.mark("step0")
    poll(p, "fa_kv", sS, vP, "0", vP + 1, 1, first_issued=True)
    ts.mark("kvpoll")
    for b in range(2, NB):
        kvload(b)
        for o in kvadv(b):
            p(o)
    step(1)
    ts.mark("loop0")
    p(f"s_mov_b32 s{scnt}, {30 // NB}")
    p(".p2align 6")
    p.label("fa_loop")
    vm0 = list(p.vm)
    for i in range(NB):
        step((2 + i) % NB, tail=[f"s_sub_u32 s{scnt}, s{scnt}, 1", f"s_cmp_lg_u32 s{scnt}, 0"] if i == NB - 1 else None)
    assert p.vm == vm0, (p.vm, vm0)
    p("s_cbranch_scc1 fa_loop")
    p(cprev)
    p(mfma(v(O + 48, 16), v(KV + 12 + 8, 4), v(P + 4, 4), v(O + 48, 16)))
    ts.mark("loop1")
    vRW, vRW1 = vX, vX + 1
    p(f"""s_mul_i32 s{st}, s{sw}, {2*RED_TILE}
        s_add_u32 s{st}, s{st}, {OX}
        v_add_u32 v{vRW}, s{st}, v{vF}
        v_lshl_add_u32 v{vRW1}, v{vl}, 2, s{st}""")
    for t in range(2):
        p(f"ds_write_b128 v{vRW}, {v(O + 16*t, 4)} offset:{RED_TILE*t}")
        p(f"ds_write_b128 v{vRW}, {v(O + 16*t + 4, 4)} offset:{RED_TILE*t + 1024}")
        p(f"ds_write_b32 v{vRW1}, v{O + 16*t + 8} offset:{RED_TILE*t + 2048}")
    sLo, sHi, sBad, sOo = 72, 73, 74, 76
    p(f"""s_xor_b32 s{st}, s{sw}, 2
        s_mul_i32 s{st}, s{st}, {2*RED_TILE}
        s_add_u32 s{st}, s{st}, {OX}
        v_add_u32 v{vRW+2}, s{st}, v{vF}
        v_lshl_add_u32 v{vRW+3}, v{vl}, 2, s{st}
        s_mov_b32 s{sLo}, {f32hex(2.0**-60)}
        s_mov_b32 s{sHi}, {f32hex(2.0**60)}
        s_lshl_b32 s{sOo}, s{stb}, 1
        s_add_u32 s{sOo}, s{sOo}, s{sks}
        s_lshl_b32 s{sOo}, s{sOo}, 6
        s_add_u32 s{sOo}, s{sOo}, s{shead}
        s_lshl_b32 s{sOo}, s{sOo}, 10
        s_add_u32 s{sOo}, s{sOo}, {WS_O}
        s_add_u32 s{sOo+1}, s{sOo}, 32768
        s_waitcnt lgkmcnt(0)
        s_barrier""")
    p.lg = []
    ts.mark("barx")
    for t in range(2):
        o = S + 12 * t
        p(f"ds_read_b128 {v(o, 4)}, v{vRW+2} offset:{RED_TILE*t}", lg=t)
        p(f"ds_read_b128 {v(o + 4, 4)}, v{vRW+2} offset:{RED_TILE*t + 1024}", lg=t)
        p(f"ds_read_b32 v{o + 8}, v{vRW+3} offset:{RED_TILE*t + 2048}", lg=t)
    for t in range(2):
        p.wait(lg=t)
        for r in range(9):
            p(f"v_add_f32 v{O + 32 + 16*t + r}, v{O + 32 + 16*t + r}, v{S + 12*t + r}")
    for t in range(2):
        R = O + 32 + 16 * t
        p(f"v_max3_f32 v{vt0}, |v{R}|, |v{R+1}|, |v{R+8}|")
        for r in range(2, 8, 2):
            p(f"v_max3_f32 v{vt0}, v{vt0}, |v{R+r}|, |v{R+r+1}|")
        p(f"v_add_f32 v{vt1}, v{R}, v{R+1}")
        for r in range(2, 8, 2):
            p(f"v_add_f32 v{vt2}, v{R+r}, v{R+r+1}\nv_add_f32 v{vt1}, v{vt1}, v{vt2}")
        p(f"""v_cmp_nge_f32 vcc, s{sHi}, v{vt0}
            v_cmp_nle_f32 s[{sBad}:{sBad+1}], s{sLo}, v{R+8}
            s_or_b64 vcc, vcc, s[{sBad}:{sBad+1}]
            v_cmp_u_f32 s[{sBad}:{sBad+1}], v{vt1}, v{vt1}
            s_or_b64 vcc, vcc, s[{sBad}:{sBad+1}]
            s_cbranch_vccnz fa_fb{t}""")
        p.label(f"fa_ok{t}")
        p(f"v_rcp_f32 v{R+8}, v{R+8}")
        for r in range(8):
            p(f"v_mul_f32 v{R+r}, v{R+r}, v{R+8}")
        for k in range(4):
            p(f"v_cvt_pk_bf16_f32 v{R+k}, v{R+2*k}, v{R+2*k+1}")
        p(f"buffer_store_dwordx4 {v(R, 4)}, v{vF}, s[{sS}:{sS+3}], s{sOo+t} offen sc1")
    ts.mark("ost")
    p("s_waitcnt vmcnt(0)")
    ts.mark("oack")
    set_flag(p, 8, vt0, vt1)
    if ts.on:
        p(f"s_lshr_b32 s{st2}, s{sm0x}, 14")
    ts.flush(sS, f"s{st2}", 2)
    p("s_endpgm")
    for t in range(2):
        p.label(f"fa_fb{t}")
        fallback(p, t, O + 32 + 16 * t, Q + 8 + 4 * t, vK, vVg)
        p(f"s_branch fa_ok{t}")


def fallback(p, t, R, Qf, vK, vV):
    sa, sc = 78, 79
    Kf, Vf, Sx, C, Pf, M = KV, KV + 4, KV + 12, KV + 28, KV + 44, KV + 52
    p(f"""s_waitcnt vmcnt(0)
        s_mov_b32 s{sa}, 0
        v_mov_b32 v{M}, 0xff7fffff""")
    p.label(f"fa_fb_max{t}")
    p(f"buffer_load_dwordx4 {v(Kf, 4)}, v{vK}, s[{sS}:{sS+3}], s{sa} offen sc1\ns_waitcnt vmcnt(0)")
    p(mfma(v(Sx, 16), v(Kf, 4), v(Qf, 4), "0"))
    p(f"s_add_u32 s{sa}, s{sa}, 1024\ns_cmp_lg_u32 s{sa}, 0x10000")
    for r in range(0, 16, 2):
        p(f"v_max3_f32 v{M}, v{M}, v{Sx+r}, v{Sx+r+1}")
    p(f"s_cbranch_scc1 fa_fb_max{t}")
    p(f"""v_mov_b32 v{M+1}, v{M}
        v_permlane32_swap_b32 v{M}, v{M+1}
        v_max_f32 v{M}, v{M}, v{M+1}
        s_mov_b32 s{sa}, 0""")
    for r in range(16):
        p(f"v_mov_b32 v{C+r}, 0")
    for r in range(8):
        p(f"v_mov_b32 v{Vf+r}, 0x3f803f80")
    p.label(f"fa_fb_pv{t}")
    p(f"""buffer_load_dwordx4 {v(Kf, 4)}, v{vK}, s[{sS}:{sS+3}], s{sa} offen sc1
        s_mov_b64 exec, s[{sEx}:{sEx+1}]
        buffer_load_dwordx4 {v(Vf, 4)}, v{vV}, s[{sS}:{sS+3}], s{sa} offen sc1
        buffer_load_dwordx4 {v(Vf+4, 4)}, v{vV}, s[{sS}:{sS+3}], s{sa} offen offset:512 sc1
        s_mov_b64 exec, -1
        s_waitcnt vmcnt(0)""")
    p(mfma(v(Sx, 16), v(Kf, 4), v(Qf, 4), "0"))
    p(f"s_add_u32 s{sa}, s{sa}, 1024\ns_cmp_lg_u32 s{sa}, 0x10000")
    for r in range(16):
        p(f"v_sub_f32 v{Sx+r}, v{Sx+r}, v{M}")
    for r in range(16):
        p(f"v_exp_f32 v{Sx+r}, v{Sx+r}")
    for k in range(8):
        p(f"v_cvt_pk_bf16_f32 v{Pf+k}, v{Sx+2*k}, v{Sx+2*k+1}")
    p(mfma(v(C, 16), v(Vf, 4), v(Pf, 4), v(C, 16)))
    p(mfma(v(C, 16), v(Vf + 4, 4), v(Pf + 4, 4), v(C, 16)))
    p(f"s_nop 7\ns_cbranch_scc1 fa_fb_pv{t}")
    for r in range(9):
        p(f"v_mov_b32 v{R+r}, v{C+r}")
    p("s_nop 1")
    p.vm = []
```

```python
from fused import *

vD, vR, vSy, vF = 5, 8, 10, 11
WF, ACC = 12, 32
sm0, sHo, sk, sWb, sHb, sth, snt, sumax = 66, 67, 68, 69, 70, 71, 72, 73


vSw, vOne = 4, 3


def sw_signal(p):
    p(f"""s_mov_b64 exec, 1
        ds_add_u32 v{vSw}, v{vOne}
        s_mov_b64 exec, -1""", lg="sig")


def sw_wait(p, name, val, cfg):
    p(f"s_mov_b32 s{scnt}, {SPIN * 8}\ns_setprio 3")
    p.label(name)
    p(f"""ds_read_b32 v{vt0}, v{vSy}
        s_waitcnt lgkmcnt(0)
        v_cmp_gt_u32 vcc, {val}, v{vt0}
        s_cbranch_vccz {name}_ok
        s_sub_u32 s{scnt}, s{scnt}, 1
        s_cmp_lg_u32 s{scnt}, 0
        s_cbranch_scc1 {name}""")
    p.label(name + "_ok")
    p(f"s_setprio {cfg['prioB1']}")
    p.lg = []


def role_b(p, ts, cfg):
    vX, vXR, vS, vA, vB, vXN, vT = 32, 36, 40, 44, 45, 46, 48
    x_addr(p, vX, vXR, 4)
    p("s_waitcnt lgkmcnt(0)")
    p.srd(sX, 4, 2 * MB)
    x_dma(p, vX)
    p.srd(sS, 22, WS_BYTES); p.srd(sW, 12, 512 * 2752); p.srd(sU, 14, 512 * 2752); p.srd(sO, 18, 2 * MB)
    x_read_addr(p, vXR)
    p(f"""v_and_b32 v{vSy}, 7, v{vl}
        v_lshlrev_b32 v{vSy}, 2, v{vSy}
        v_add_u32 v{vSy}, {SYNC}, v{vSy}
        v_mov_b32 v{vt0}, 0
        ds_write_b32 v{vSy}, v{vt0}
        v_lshlrev_b32 v{vF}, 4, v{vl}
        v_add_u32 v{vXN}, s{sm0x}, v{vF}
        s_mul_i32 s{sm0}, s{sw}, 3072
        s_mul_i32 s{st}, s{sw}, {16*2752}
        s_mul_i32 s{st2}, s{sj}, 192
        s_add_u32 s{st}, s{st}, s{st2}""")
    for i in range(3):
        p(f"""v_add_u32 v{vt0}, {64*i}, v{vl}
            v_mul_u32_u24 v{vt1}, 21846, v{vt0}
            v_lshrrev_b32 v{vt1}, 18, v{vt1}
            v_mul_u32_u24 v{vt2}, {2752 - 192}, v{vt1}
            v_lshl_add_u32 v{vt2}, v{vl}, 4, v{vt2}
            v_add_u32 v{vD+i}, s{st}, v{vt2}""")
    p(f"""v_lshrrev_b32 v{vt0}, 5, v{vl}
        v_lshlrev_b32 v{vt0}, 3, v{vt0}
        v_bfe_u32 v{vt1}, v{vl}, 2, 2
        v_add_u32 v{vt0}, v{vt0}, v{vt1}
        v_mul_u32_u24 v{vt0}, 192, v{vt0}
        v_bfe_u32 v{vt1}, v{vl}, 4, 1
        v_mul_u32_u24 v{vt1}, 12320, v{vt1}
        v_add_u32 v{vt0}, v{vt0}, v{vt1}
        v_and_b32 v{vt1}, 3, v{vl}
        v_lshl_add_u32 v{vt0}, v{vt1}, 3, v{vt0}
        v_add_u32 v{vR}, {SLOTS[0]}, v{vt0}
        v_add_u32 v{vR+1}, {SLOTS[1]}, v{vt0}
        v_mov_b32 v0, v{vt0}""")
    for c in range(8):
        p(f"""s_add_u32 s{st}, s{srot}, {c}
            s_and_b32 s{st}, s{st}, 7
            s_mul_i32 s{sWo+c}, s{st}, {64*2752}""")
    for sp in range(4):
        p(f"v_subrev_u32 v{vT+sp}, {R1}, v{vXR+sp}")
    p("s_barrier")
    for f in range(16):
        p(f"ds_read_b128 {v(X + 4*f, 4)}, v{vT + f % 4} offset:{4096*(f // 4)}", lg="raw")
    x_stats(p, ts, X + 64, vXR, vS, vA, vB, 1, lambda c: None, lambda: None)

    def gdma(c):
        for m, srd in enumerate((sW, sU)):
            p(f"s_add_u32 m0, s{sm0}, {SLOTS[c] + m*12320}")
            for i in range(3):
                p(f"buffer_load_dwordx4 v{vD+i}, s[{srd}:{srd+3}], s{sWo+c} offen offset:{1024*i} lds", vm=("w", c))

    for ks in range(16, 32):
        for o in norm_ops(ks, vT, vA, vB):
            p(o)
        p(f"ds_write_b128 v{vXN}, {v(X + 4*ks, 4)} offset:{1024*(ks-16)}")
        for n in cfg["bnorm"]:
            if (ks - 15) == 4 * n:
                p("s_barrier")
    p.wait(lg="all")
    p("s_barrier")
    for ks in range(16):
        for o in norm_ops(ks, vT, vA, vB):
            p(o)
        if ks in (2, 7, 12):
            p("s_barrier")
            if cfg["gu_first"] == {2: 4, 7: 5, 12: 6}[ks]:
                gdma(0)
    p(f"""s_lshl_b32 s{st}, s{sw}, 2
        s_add_u32 s{st}, s{st}, {SYNC + 16}
        v_mov_b32 v{vSw}, s{st}
        v_mov_b32 v{vOne}, 1
        s_barrier
        s_setprio {cfg['prioB1']}""")
    ts.mark("bar7")
    p(f"s_cmp_eq_u32 s{sj}, 15\ns_cbranch_scc1 fb_gu_skip")
    gdma(1)
    p.wait(vm=("w", 0))
    ts.mark("w0")
    sw_signal(p)
    sw_wait(p, "fb_sw0", 1, cfg)
    ts.mark("sw0")
    gdma(2)

    def wread(n):
        ks, u = divmod(n, 6)
        c, sp = divmod(ks, 4)
        base, off = {R2: (vR, 0), 59392: (vR + 1, 0), 59392 + SLOT: (vR + 1, SLOT), 0: (0, 0), SLOT: (0, SLOT)}[SLOTS[c]]
        off += 3072 * sp + 32 * u
        r = WF + 4 * (n % 5)
        p(f"ds_read_b64_tr_b16 {v(r, 2)}, v{base} offset:{off}", lg=("w", n))
        p(f"ds_read_b64_tr_b16 {v(r+2, 2)}, v{base} offset:{off + 768}", lg=("w", n))

    def touch(i):
        p(f"""s_lshr_b32 s{st}, s2, 3
            s_lshl_b32 s{st}, s{st}, 2
            s_add_u32 s{st}, s{st}, s{sw}
            v_lshlrev_b32 v{vD}, 7, v{vl}""")
        if i == 0:
            p.srd(sW, 16, 1376 * 1024)
            p(f"""s_lshl_b32 s{st}, s{st}, 13
                buffer_load_dword v{X}, v{vD}, s[{sW}:{sW+3}], s{st} offen""", vm="touch")
        else:
            p.srd(sU, 8, 512 * 1024)
            p(f"""s_mul_i32 s{st2}, s{st}, 2816
                s_add_u32 s{st2}, s{st2}, 0x100000
                s_lshl_b32 s{st}, s{st}, 12
                s_mov_b64 exec, 0x3fffff
                buffer_load_dword v{X+1}, v{vD}, s[{sW}:{sW+3}], s{st2} offen
                s_mov_b32 exec_lo, -1
                buffer_load_dword v{X+2}, v{vD}, s[{sU}:{sU+3}], s{st} offen
                s_mov_b64 exec, -1""", vm="touch")

    D = 4
    for n in range(D):
        wread(n)
    for n in range(192):
        ks, u = divmod(n, 6)
        if n % 24 == 8 and n < 168:
            p.wait(vm=("w", n // 24 + 1))
            sw_signal(p)
        if (n + D) % 24 == 0 and n + D < 192:
            c = (n + D) // 24
            ts.mark(f"c{c}")
            sw_wait(p, f"fb_sw{c}", c + 1, cfg)
            ts.mark(f"sw{c}")
            if c + 2 < 8:
                gdma(c + 2)
            elif cfg["touch"]:
                touch(c - 6)
        p.wait(lg=("w", n))
        acc = v(ACC + 16 * u, 16)
        p(mfma(acc, v(WF + 4 * (n % 5), 4), v(X + 4 * ks, 4), "0" if ks == 0 else acc))
        if n + D < 192:
            wread(n + D)
    p(f"s_setprio {cfg['prioB2']}")
    sw_signal(p)
    ts.mark("guend")
    p(f"""s_lshl_b32 s{sHo}, s{stb}, 2
        s_add_u32 s{sHo}, s{sHo}, s{sw}
        s_mul_i32 s{sHo}, s{sHo}, 86
        s_mul_i32 s{st}, s{sj}, 6
        s_add_u32 s{sHo}, s{sHo}, s{st}
        s_lshl_b32 s{sHo}, s{sHo}, 10
        s_add_u32 s{sHo}, s{sHo}, {WS_H}
        s_add_u32 s{st2}, s{sHo}, 4096""")
    for u in range(6):
        A = ACC + 16 * u
        if u == 2:
            p(f"s_cmp_eq_u32 s{sj}, 14\ns_cbranch_scc1 fb_h_done")
        for r in range(8):
            p(f"v_max_f32 v{A+r}, 0, v{A+r}")
        for r in range(8):
            p(f"v_mul_f32 v{A+r}, v{A+r}, v{A+8+r}")
        for k in range(4):
            p(f"v_cvt_pk_bf16_f32 v{A+k}, v{A+2*k}, v{A+2*k+1}")
        p(f"buffer_store_dwordx4 {v(A, 4)}, v{vF}, s[{sS}:{sS+3}], s{sHo if u < 4 else st2} offen offset:{1024*(u % 4)} sc1", vm="h")
    p("s_branch fb_h_done")
    p.label("fb_gu_skip")
    p(f"v_mov_b32 v{vOne}, 9")
    if cfg["touch"]:
        keep = list(p.vm)
        touch(0); touch(1)
        p.vm = keep
    sw_signal(p)
    p.label("fb_h_done")
    ts.mark("hst")
    sw_wait(p, "fb_sw8", 9, dict(prioB1=cfg["prioB2"]))
    HF, WO, XR = 128, 192, 96
    vH, vO, vP, vXa, vRed = 104, 106, 108, 110, 111
    p.srd(sW, 16, 1376 * 1024); p.srd(sU, 8, 512 * 1024)
    p(f"""s_and_b32 s{sth}, s2, 7
        s_lshl_b32 s{sth}, s{sth}, 2
        s_bfe_u32 s{st}, s2, 0x20003
        s_add_u32 s{sth}, s{sth}, s{st}
        s_lshr_b32 s{snt}, s2, 5
        s_lshl_b32 s{st}, s{st}, 1
        s_add_u32 s{st}, s{st}, s{snt}
        s_mul_i32 s{sk}, s{st}, 3
        s_cmp_ge_u32 s{sk}, 22
        s_cselect_b32 s{st}, 22, 0
        s_sub_u32 s{sk}, s{sk}, s{st}
        s_mov_b32 s{sHo}, s{sk}
        s_mul_i32 s{sm0}, s{sw}, {RING*2048}
        s_mul_i32 s{sWb}, s{sw}, {22*16*1024}
        s_lshl_b32 s{st}, s{snt}, 7
        s_add_u32 s{sWb}, s{sWb}, s{st}
        s_mul_i32 s{sHb}, s{sw}, 22
        s_sub_u32 s{sumax}, 85, s{sHb}
        s_mul_i32 s{st}, s{sth}, 172
        s_add_u32 s{sHb}, s{sHb}, s{st}
        s_lshl_b32 s{sHb}, s{sHb}, 10
        s_add_u32 s{sHb}, s{sHb}, {WS_H}""")
    w128_dma_addr(p, vD, vl, vt0, vt1)
    p(f"v_add_u32 v{vD+1}, 7168, v{vD}")

    def wdma(k):
        p(f"s_add_u32 m0, s{sm0}, {2048*(k % RING)}")
        if k < 22:
            p(f"""s_lshl_b32 s{st}, s{sk}, 14
                s_add_u32 s{st}, s{st}, s{sWb}
                s_add_u32 s{sk}, s{sk}, 1
                s_cmp_eq_u32 s{sk}, 22
                s_cselect_b32 s{sk}, 0, s{sk}""")
        else:
            p(f"""s_lshl_b32 s{st}, s{sw}, 17
                s_lshl_b32 s{st2}, s{snt}, 7
                s_add_u32 s{st}, s{st}, s{st2}
                s_add_u32 s{st}, s{st}, {(k-22)*16384}""")
        srd = sW if k < 22 else sU
        for i in range(2):
            p(f"buffer_load_dwordx4 v{vD+i}, s[{srd}:{srd+3}], s{st} offen offset:{1024*i} lds", vm=("w", k))

    def hload(k):
        p(f"""s_min_u32 s{st}, s{sHo}, s{sumax}
            s_lshl_b32 s{st}, s{st}, 10
            s_add_u32 s{st}, s{st}, s{sHb}
            s_add_u32 s{sHo}, s{sHo}, 1
            s_cmp_eq_u32 s{sHo}, 22
            s_cselect_b32 s{sHo}, 0, s{sHo}""")
        for tt in range(2):
            p(f"buffer_load_dwordx4 {v(HF + 8*(k % 8) + 4*tt, 4)}, v{vH+tt}, s[{sS}:{sS+3}], s{st} offen sc1", vm=("h", k))

    WP = cfg["wpace"]
    for k in range(WP):
        wdma(k)
    p.wait(vm="h")
    ts.mark("hack")
    set_flag(p, 4, vt0, vt1)
    tr_addr_perm(p, vR, vl, vt0, vt1, 7)
    p(f"""s_and_b32 s{st}, s{sw}, 1
        s_lshl_b32 s{st}, s{st}, 6
        v_xor_b32 v{vR}, s{st}, v{vR}
        v_add_u32 v{vR}, s{sm0}, v{vR}
        v_xor_b32 v{vR+1}, 64, v{vR}
        s_lshr_b32 s{st}, s{sw}, 1
        s_mul_i32 s{st2}, s{st}, {86*1024}
        v_add_u32 v{vH}, s{st2}, v{vF}
        s_sub_u32 s{st2}, {86*1024}, s{st2}
        v_add_u32 v{vH+1}, s{st2}, v{vF}
        s_lshl_b32 s{st2}, s{st}, 15
        v_add_u32 v{vO}, s{st2}, v{vF}
        v_xor_b32 v{vO+1}, 0x8000, v{vO}
        s_lshr_b32 s{st}, s{sth}, 1
        s_lshl_b32 s{st}, s{st}, 11
        s_and_b32 s{st2}, s{sth}, 1
        s_lshl_b32 s{st2}, s{st2}, 3
        s_add_u32 s{st}, s{st}, s{st2}
        s_add_u32 s{st}, s{st}, {WS_F + 16}
        v_and_b32 v{vt1}, 1, v{vl}
        v_lshl_add_u32 v{vt1}, v{vt1}, 2, s{st}
        v_bfe_u32 v{vt0}, v{vl}, 1, 4
        v_lshl_add_u32 v{vP}, v{vt0}, 7, v{vt1}
        v_and_b32 v{vt0}, 3, v{vt0}
        v_lshl_add_u32 v{vt1}, v{vt0}, 7, v{vt1}
        s_lshl_b32 s{st}, s{sw}, 9
        s_add_u32 s{st}, s{st}, 16
        v_add_u32 v{vP+1}, s{st}, v{vt1}
        v_and_b32 v{vt0}, 31, v{vl}
        v_lshlrev_b32 v{vt0}, 10, v{vt0}
        v_lshrrev_b32 v{vt1}, 5, v{vl}
        v_lshl_add_u32 v{vXa}, v{vt1}, 5, v{vt0}""")
    for k in range(WP, RING):
        p.wait(vm=("w", k - WP))
        wdma(k)
    ts.mark("ring")
    poll(p, "fb_h", sS, vP, "0", vt2, 1)
    ts.mark("hpoll")
    p(f"s_setprio {cfg['prioB1']}")
    HD = cfg["hdepth"]
    for k in range(HD):
        hload(k)

    def wread2(k):
        for nt in range(2):
            r = (WF + 8 * (k & 1) if k < 22 else WO + 8 * (k - 22)) + 4 * nt
            off = 2048 * (k % RING)
            p(f"ds_read_b64_tr_b16 {v(r, 2)}, v{vR+nt} offset:{off}", lg=("w", k))
            p(f"ds_read_b64_tr_b16 {v(r+2, 2)}, v{vR+nt} offset:{off + 1024}", lg=("w", k))

    wread2(0)
    for k in range(22):
        p.wait(vm=("w", k + 1))
        wread2(k + 1)
        p.wait(vm=("h", k), lg=("w", k))
        for tt in range(2):
            for nt in range(2):
                acc = v(ACC + 32 * tt + 16 * nt, 16)
                p(mfma(acc, v(WF + 8 * (k & 1) + 4 * nt, 4), v(HF + 8 * (k % 8) + 4 * tt, 4), "0" if k == 0 else acc))
            if tt == 0 and k + HD < 22:
                hload(k + HD)
        if k + RING < 30:
            wdma(k + RING)
    sOut, sOb = sHb, sWb
    p(f"s_setprio {cfg['prioB2']}")
    p(f"""s_lshl_b32 s{sOut}, s{sth}, 1
        s_lshr_b32 s{st}, s{sw}, 1
        s_add_u32 s{sOut}, s{sOut}, s{st}
        s_lshl_b32 s{sOut}, s{sOut}, 15
        s_lshl_b32 s{st}, s{snt}, 1
        s_and_b32 s{st2}, s{sw}, 1
        s_add_u32 s{st}, s{st}, s{st2}
        s_lshl_b32 s{st}, s{st}, 6
        s_add_u32 s{sOut}, s{sOut}, s{st}
        s_lshl_b32 s{sOb}, s{sth}, 16
        s_lshl_b32 s{st}, s{sw}, 13
        s_add_u32 s{sOb}, s{sOb}, s{st}
        s_add_u32 s{sOb}, s{sOb}, {WS_O}
        s_add_u32 s{sk}, s{sOb}, 4096""")
    for i in range(2):
        p(f"buffer_load_dwordx4 {v(XR + 4*i, 4)}, v{vXa}, s[{sX}:{sX+3}], s{sOut} offen offset:{16*i}", vm="x")
    for k in range(23, 30):
        p.wait(vm=("w", k))
        wread2(k)
    p.wait(vm="x")
    for k in range(8):
        p(f"""v_lshlrev_b32 v{vt0}, 16, v{XR+k}
            v_and_b32 v{vt1}, 0xffff0000, v{XR+k}
            v_add_f32 v{ACC+2*k}, v{ACC+2*k}, v{vt0}
            v_add_f32 v{ACC+2*k+1}, v{ACC+2*k+1}, v{vt1}""")
    for q in range(1, 4):
        p(f"s_xor_b32 s{st}, s{sw}, {q}\ns_mul_i32 s{st}, s{st}, 12288\nv_add_u32 v{vRed+q}, s{st}, v{vF}")
    p(f"s_mul_i32 s{st}, s{sw}, 12288\nv_add_u32 v{vRed}, s{st}, v{vF}")
    p.wait(lg="all")
    ts.mark("dnend")
    p("s_barrier")
    ts.mark("barx")
    p(f"s_setprio 3")
    poll(p, "fb_o", sS, vP + 1, "0", vt2, 1)
    ts.mark("opoll")
    for k in range(8):
        for tt in range(2):
            p(f"buffer_load_dwordx4 {v(HF + 8*k + 4*tt, 4)}, v{vO+tt}, s[{sS}:{sS+3}], s{sOb if k < 4 else sk} offen offset:{1024*(k % 4)} sc1", vm=("o", k, tt))
    for k in range(8):
        for tt in (1, 0):
            p.wait(vm=("o", k, 1))
            for nt in (1, 0):
                acc = v(ACC + 32 * tt + 16 * nt, 16)
                p(mfma(acc, v(WO + 8 * k + 4 * nt, 4), v(HF + 8 * k + 4 * tt, 4), acc))
    ts.mark("omm")
    for q in (3, 2, 1):
        for i in range(4):
            p(f"ds_write_b128 v{vRed+q}, {v(ACC + 16*q + 4*i, 4)} offset:{4096*(q-1) + 1024*i}")
    p("s_waitcnt lgkmcnt(0)\ns_barrier")
    p.lg = []
    for q in range(1, 4):
        for i in range(4):
            p(f"ds_read_b128 {v(ACC + 16*q + 4*i, 4)}, v{vRed} offset:{4096*(q-1) + 1024*i}", lg=q)
    for q in range(1, 4):
        p.wait(lg=q)
        for r in range(16):
            p(f"v_add_f32 v{ACC+r}, v{ACC+r}, v{ACC + 16*q + r}")
    for k in range(8):
        p(f"v_cvt_pk_bf16_f32 v{XR+k}, v{ACC+2*k}, v{ACC+2*k+1}")
    for i in range(2):
        p(f"buffer_store_dwordx4 {v(XR + 4*i, 4)}, v{vXa}, s[{sO}:{sO+3}], s{sOut} offen offset:{16*i}")
    if ts.on:
        p(f"s_lshr_b32 s{st2}, s{sm0x}, 14")
    ts.flush(sS, f"s{st2}", 2)
```

```python
import sys
from asm import finish, Prog
import k_qkv, k_attn, k_ffn

NAME = "parallel_sum__softmax_full_mha__glu_gated_reglu__prompt"


def header():
    ref = open(f"cdna_kernels/{NAME}.s.ref").read().split("\n")
    return [l for l in ref if l.startswith(";") and "@launch" not in l]


def empty():
    p = Prog("empty_kernel")
    p("s_endpgm")
    return (p, 8, 0), ("empty_kernel", 256, 256, 0)


def generate(variant="base", prof=False):
    if variant.startswith("fz"):
        import fused
        kw = {}
        for o in variant.split(",")[1:]:
            k, val = o.split("=")
            kw[k] = eval(val) if k not in ("map", "ma", "mb") else val
        kern, launch = fused.build(prof, **kw)
        return finish(header(), [kern], [launch])
    parts = [k_qkv.build(prof), k_ffn.build_gu(prof), k_attn.build(prof), k_ffn.build_dn(prof), k_ffn.build_out(prof)]
    kernels = [x[0] for x in parts]
    launches = [x[1] for x in parts]
    if variant.startswith("empty"):
        e = empty()
        kernels.append(e[0])
        launches += [e[1]] * int(variant[5:])
    if variant.startswith("dup"):
        i = int(variant[3:])
        launches.insert(i, launches[i])
    return finish(header(), kernels, launches)


if __name__ == "__main__":
    variant = sys.argv[1] if len(sys.argv) > 1 else "base"
    out = sys.argv[2] if len(sys.argv) > 2 else f"cdna_kernels/{NAME}.s"
    prof = sys.argv[3] if len(sys.argv) > 3 else False
    open(out, "w").write(generate(variant, prof))
    print("wrote", out)
```

```python
import re

TRANS = ("v_exp_", "v_log_", "v_rcp_", "v_rsq_", "v_sqrt_", "v_sin_", "v_cos_")
REG = re.compile(r"(?<![\w.])([vas])(?:(\d+)|\[(\d+):(\d+)\])(?![\w])")


def regs_of(tok):
    out = set()
    for m in REG.finditer(tok):
        k = m.group(1)
        if m.group(2) is not None:
            out.add((k, int(m.group(2))))
        else:
            out.update((k, i) for i in range(int(m.group(3)), int(m.group(4)) + 1))
    if re.search(r"\bvcc\b", tok):
        out.add(("s", "vcc"))
    if re.search(r"\bm0\b", tok):
        out.add(("s", "m0"))
    if re.search(r"\bexec\b", tok):
        out.add(("s", "exec"))
    return out


def split_ops(s):
    ops, depth, cur = [], 0, ""
    for ch in s:
        if ch == "[":
            depth += 1
        if ch == "]":
            depth -= 1
        if ch == "," and depth == 0:
            ops.append(cur.strip()); cur = ""
        else:
            cur += ch
    if cur.strip():
        ops.append(cur.strip())
    return ops


class Ins:
    def __init__(self, text):
        self.text = text
        t = text.split(";")[0].strip()
        self.label = t.endswith(":")
        self.directive = t.startswith(".") or not t
        self.op = t.split()[0] if t else ""
        self.real = not (self.label or self.directive)
        rest = t[len(self.op):].strip()
        ops = split_ops(rest) if self.real else []
        self.ops = ops
        op = self.op
        self.mfma = op.startswith("v_mfma")
        self.valu = op.startswith("v_") and not self.mfma
        self.trans = op.startswith(TRANS)
        self.dot = op.startswith("v_dot")
        self.ds = op.startswith("ds_")
        self.vmem = op.startswith(("buffer_", "global_"))
        self.salu = op.startswith("s_")
        self.ldsdma = self.vmem and re.search(r"\blds\b", t) is not None or op.startswith("global_load_lds")
        self.dpp = "dpp" in op or "row_" in t or "quad_perm" in t
        self.dst, self.src = set(), set()
        self.srcC = set(); self.srcAB = set(); self.wide_data = set()
        R = [regs_of(o) for o in ops]
        if not self.real:
            return
        if self.mfma:
            self.dst = R[0]; self.srcAB = R[1] | R[2]; self.srcC = R[3]; self.src = self.srcAB | self.srcC
            self.passes = 8 if "32x32" in op else (2 if "4x4x4" in op else 4)
        elif self.valu:
            self.dst = set(R[0]) if R else set()
            rest_src = R[1:]
            if op.startswith(("v_add_co", "v_sub_co", "v_addc_co", "v_subb_co")):
                self.dst |= R[1]; rest_src = R[2:]
            for r in rest_src:
                self.src |= r
            if op.startswith(("v_permlane16_swap", "v_permlane32_swap", "v_swap")):
                self.dst |= R[1]; self.src |= R[0]
            if op.startswith(("v_dot2c", "v_fmac", "v_mac", "v_pk_fmac")) or "UNUSED_PRESERVE" in t or self.dpp:
                self.src |= R[0]
            if op.startswith("v_cmpx"):
                self.dst.add(("s", "exec"))
        elif self.ds:
            if op.startswith("ds_read") or "_rtn" in op or op.startswith(("ds_bpermute", "ds_permute", "ds_swizzle")):
                self.dst = R[0]
                for r in R[1:]:
                    self.src |= r
            else:
                for r in R:
                    self.src |= r
        elif self.vmem:
            if "load" in op and not self.ldsdma:
                self.dst = R[0]
                for r in R[1:]:
                    self.src |= r
            else:
                for r in R:
                    self.src |= r
                if "atomic" in op and re.search(r"\bsc0\b", t):
                    self.dst = R[0]
                if "store" in op and ("x4" in op or "x3" in op):
                    self.wide_data = R[0] if op.startswith("buffer") else R[1]
            if self.ldsdma:
                self.src.add(("s", "m0"))
        elif self.salu:
            if op.startswith(("s_cmp", "s_cbranch", "s_branch", "s_waitcnt", "s_nop", "s_barrier", "s_endpgm", "s_setprio", "s_sleep", "s_bitcmp")):
                for r in R:
                    self.src |= r
            else:
                self.dst = set(R[0]) if R else set()
                for r in R[1:]:
                    self.src |= r
                if "saveexec" in op:
                    self.dst.add(("s", "exec"))

    def states(self):
        if not self.real:
            return 0
        if self.op == "s_nop":
            return int(self.ops[0]) + 1
        return 1


def need(p, c):
    n = 0
    vec = lambda S: {r for r in S if r[0] in "va"}
    sca = lambda S: {r for r in S if r[0] == "s"}
    if p.valu:
        w = vec(p.dst)
        if c.mfma and w & c.src:
            n = max(n, 3 if p.dot else 2)
        if p.trans and c.valu and not c.trans and w & c.src:
            n = max(n, 1)
        if c.op.startswith(("v_readlane", "v_readfirstlane")) and w & c.src:
            n = max(n, 1)
        if (c.op.startswith("v_permlane") or c.dpp) and w & c.src:
            n = max(n, 2)
        if p.dot and (c.valu or c.vmem or c.ds) and w & (c.src | c.dst):
            if c.op == p.op:
                ab = set()
                for o in c.ops[1:3]:
                    ab |= regs_of(o)
                if w & ab:
                    n = max(n, 3)
            else:
                n = max(n, 3)
        if ("op_sel" in p.text or "sdwa" in p.op) and c.valu and w & (c.src | c.dst):
            n = max(n, 1)
        ws = sca(p.dst)
        if ws:
            if c.vmem and ws & c.src:
                n = max(n, 5)
            if c.valu and ws & c.src:
                n = max(n, 4 if c.op.startswith(("v_readlane", "v_writelane")) else 2)
            if ("s", "exec") in ws and (c.mfma or c.op.startswith(("v_read", "v_write", "v_perm"))):
                n = max(n, 4)
            if ("s", "exec") in ws and c.dpp:
                n = max(n, 5)
    if p.mfma:
        k = {2: 0, 4: 1, 8: 2}[p.passes]
        if c.mfma:
            if p.dst & c.srcAB:
                n = max(n, (5, 8, 12)[k])
            if p.dst & c.srcC:
                exact = p.dst == c.srcC and p.passes == c.passes
                n = max(n, (2, 0, 0)[k] if exact else (4, 6, 10)[k])
        elif (c.valu or c.vmem or c.ds) and p.dst & (c.src | c.dst):
            n = max(n, (5, 8, 12)[k])
        if c.valu and p.srcC & c.dst:
            n = max(n, (1, 3, 7)[k])
    if p.salu and ("s", "m0") in p.dst and (c.ldsdma or "addtid" in c.op):
        n = max(n, 1)
    if p.wide_data and p.wide_data & c.dst:
        n = max(n, 2 if (c.valu or c.mfma) else 1)
    return n


def fix_hazards(lines):
    ins = [Ins(l) for l in lines]
    out = []
    added = 0
    for c in ins:
        if c.real:
            dist = 0; pad = 0
            for p in reversed(out):
                if dist >= 20:
                    break
                if p.real:
                    if p.op in ("s_branch", "s_endpgm"):
                        break
                    pad = max(pad, need(p, c) - dist)
                    dist += p.states()
            if pad > 0:
                out.append(Ins(f"    s_nop {pad-1}")); added += 1
        out.append(c)
    labels = {i.text.split(";")[0].strip()[:-1]: k for k, i in enumerate(out) if i.label}
    for k, b in enumerate(out):
        if b.op.startswith(("s_cbranch", "s_branch")):
            tgt = labels[b.ops[0]]
            after = []
            d = 0
            for c in out[tgt:]:
                if c.real:
                    after.append((c, d)); d += c.states()
                    if d >= 20 or c.op in ("s_branch", "s_endpgm"):
                        break
            dist = 0
            for p in reversed(out[:k + 1]):
                if dist >= 20:
                    break
                if p.real:
                    if p is not b and p.op in ("s_branch", "s_endpgm"):
                        break
                    for c, d in after:
                        if need(p, c) > dist + d:
                            raise SystemExit(f"hazard across branch {b.text.strip()}: {p.text.strip()} -> {c.text.strip()}")
                    dist += p.states()
    return [i.text for i in out], added


class Prog:
    def __init__(self, name):
        self.name = name
        self.lines = []
        self.vm = []
        self.lg = []

    def __call__(self, s, vm=None, lg=None):
        for l in s.split("\n"):
            l = l.strip()
            if not l:
                continue
            self.lines.append(l if (l.endswith(":") or l.startswith(".")) else "    " + l)
            op = l.split()[0]
            if op.startswith(("buffer_", "global_")) and not op.startswith(("buffer_inv", "buffer_wb")):
                self.vm.append(vm)
            if op.startswith("ds_"):
                self.lg.append(lg)

    def label(self, s):
        self.lines.append(s + ":")

    def _cnt(self, q, tag):
        idx = [i for i, t in enumerate(q) if t == tag]
        if not idx:
            return None
        return len(q) - 1 - idx[-1]

    def wait(self, vm=None, lg=None):
        parts = []
        if vm is not None:
            n = 0 if vm == "all" else self._cnt(self.vm, vm)
            if n is not None:
                n = min(n, 63)
                parts.append(f"vmcnt({n})"); self.vm = self.vm[len(self.vm) - n:] if n else []
        if lg is not None:
            n = 0 if lg == "all" else self._cnt(self.lg, lg)
            if n is not None:
                n = min(n, 15)
                parts.append(f"lgkmcnt({n})"); self.lg = self.lg[len(self.lg) - n:] if n else []
        if parts:
            self.lines.append("    s_waitcnt " + " ".join(parts))

    def srd(self, d, base, nbytes):
        self(f"s_mov_b32 s{d}, s{base}\ns_mov_b32 s{d+1}, s{base+1}\ns_mov_b32 s{d+2}, {nbytes}\ns_mov_b32 s{d+3}, 0x20000")


def v(i, n=1):
    return f"v{i}" if n == 1 else f"v[{i}:{i+n-1}]"


def a(i, n=1):
    return f"a{i}" if n == 1 else f"a[{i}:{i+n-1}]"


def s(i, n=1):
    return f"s{i}" if n == 1 else f"s[{i}:{i+n-1}]"


def mfma(d, x, y, c):
    return f"v_mfma_f32_32x32x16_bf16 {d}, {x}, {y}, {c}"


def finish(header, kernels, launches):
    out = list(header)
    for name, grid, block, lds in launches:
        kn = f"kernel={name} " if len(launches) > 1 else ""
        out.append(f"; @launch {kn}grid=({grid},1,1) block=({block},1,1) lds={lds}")
    out.append('.amdgcn_target "amdgcn-amd-amdhsa--gfx950"')
    out.append(".text")
    for p, nv, na in kernels:
        lines, added = fix_hazards(p.lines)
        out += [f".globl {p.name}", ".p2align 8", f".type {p.name},@function", f"{p.name}:"]
        out += lines
    out.append('.section .rodata,"a"')
    for p, nv, na in kernels:
        acc = (nv + 3) // 4 * 4
        out += [".p2align 6", f".amdhsa_kernel {p.name}", f"  .amdhsa_next_free_vgpr {acc + na if na else nv}",
                "  .amdhsa_next_free_sgpr 100", f"  .amdhsa_accum_offset {acc}", "  .amdhsa_group_segment_fixed_size 0",
                "  .amdhsa_kernarg_size 80", "  .amdhsa_user_sgpr_count 2", "  .amdhsa_user_sgpr_kernarg_segment_ptr 1",
                "  .amdhsa_system_sgpr_workgroup_id_x 1", "  .amdhsa_float_denorm_mode_32 3", "  .amdhsa_ieee_mode 0", ".end_amdhsa_kernel"]
    return "\n".join(out) + "\n"
```

```python
from common import *
from k_ffn import tr_addr_perm, w128_dma_addr

K = 1024
WS_F = 20 * MB
R1, R2 = 64 * K, 128 * K
SLOT = 24832
SLOTS = (R2, 59392 + SLOT, 59392, 0, SLOT, 59392 + SLOT, 59392, 0)
OX, RED_TILE = 108 * K, 2304
STAT, SYNC, RSTD = 155904, 160256, 160512
RING = 13
LDS = 160 * K
SPIN = 1 << 15

sw, sX, sS, sW, sU, sO = 3, 24, 28, 32, 36, 40
stb, sj, srot, st, st2, sone, sm0x, scnt, sFl = 44, 45, 46, 47, 48, 49, 50, 51, 52
sXo, sWo = 54, 58
vl, vt0, vt1, vt2 = 1, 2, 3, 4
X = 128
CFG = dict(ma="bar0+bar1+kvend+bar7+loop0+loop1", mb="bar0+bar7+guend+hpoll+dnend+opoll", map="4x8", prioA=2, prioB1=0, prioB2=3, gu_first=4, hdepth=4, bnorm=(8, 14), prenorm=4, xpace=2, prioA0=0, kvpre=3, touch=1, wpace=4)


def poll(p, name, srd, vaddr, soff, vtmp, val, first_issued=False):
    p(f"s_mov_b32 s{scnt}, {SPIN}")
    if first_issued:
        p(f"s_branch {name}_chk")
    p.label(name)
    p(f"buffer_load_dword v{vtmp}, v{vaddr}, s[{srd}:{srd+3}], {soff} offen sc1")
    p.label(name + "_chk")
    p(f"""s_waitcnt vmcnt(0)
        v_cmp_ne_u32 vcc, {val}, v{vtmp}
        s_cbranch_vccz {name}_ok
        s_sub_u32 s{scnt}, s{scnt}, 1
        s_cmp_lg_u32 s{scnt}, 0
        s_cbranch_scc1 {name}""")
    p.label(name + "_ok")
    p.vm = []


def set_flag(p, word_base, va, vd):
    p(f"""s_lshl_b32 s{st}, s{sw}, 2
        s_add_u32 s{st}, s{st}, s{sFl}
        v_mov_b32 v{va}, 0
        v_mov_b32 v{vd}, 1
        s_mov_b64 exec, 1
        buffer_store_dword v{vd}, v{va}, s[{sS}:{sS+3}], s{st} offen offset:{4*word_base} sc1
        s_mov_b64 exec, -1""", vm="flag")


def x_addr(p, vX, vXR, c0):
    for c in range(4):
        p(f"""s_add_u32 s{st}, s{srot}, {c0 + c}
            s_and_b32 s{st}, s{st}, 7
            s_lshl_b32 s{st}, s{st}, 7
            s_add_u32 s{sXo+c}, s{st2}, s{st}""")
    p(f"""v_lshrrev_b32 v{vt0}, 4, v{vl}
        v_and_b32 v{vt1}, 7, v{vl}
        v_xor_b32 v{vt0}, v{vt0}, v{vt1}
        v_lshlrev_b32 v{vt0}, 4, v{vt0}
        v_lshrrev_b32 v{vt1}, 3, v{vl}
        v_lshl_add_u32 v{vX}, v{vt1}, 10, v{vt0}
        v_xor_b32 v{vX+1}, 64, v{vX}
        v_add_u32 v{vX+2}, {2*7168}, v{vX}
        v_add_u32 v{vX+3}, {3*7168}, v{vX+1}
        v_add_u32 v{vX+1}, 7168, v{vX+1}""")


def x_dma(p, vX, chunks):
    for c in chunks:
        p(f"s_add_u32 m0, s{sm0x}, {4096*c}")
        for i in range(4):
            p(f"buffer_load_dwordx4 v{vX+i}, s[{sX}:{sX+3}], s{sXo+c} offen offset:{1024*i} lds", vm=("x", c))


def x_read_addr(p, vXR):
    p(f"""v_and_b32 v{vt0}, 31, v{vl}
        v_lshrrev_b32 v{vt1}, 5, v{vl}
        v_bfe_u32 v{vt2}, v{vl}, 1, 3
        v_xor_b32 v{vt1}, v{vt1}, v{vt2}
        v_lshlrev_b32 v{vt1}, 4, v{vt1}
        v_lshl_add_u32 v{vt0}, v{vt0}, 7, v{vt1}
        v_add_u32 v{vXR}, s{sm0x}, v{vt0}
        v_xor_b32 v{vXR+1}, 32, v{vXR}
        v_xor_b32 v{vXR+2}, 64, v{vXR}
        v_xor_b32 v{vXR+3}, 96, v{vXR}""")


def x_stats(p, ts, XB, vXR, vS, vA, vB, CM, role, after_wait, after_stats, after_bar):
    for i in range(4):
        p(f"v_mov_b32 v{vS+i}, 0")
    p(f"""s_lshl_b32 s{st}, s{sw}, 10
        s_add_u32 s{st}, s{st}, {STAT}
        v_lshl_add_u32 v{vB}, v{vl}, 3, s{st}
        v_and_b32 v{vt0}, 1, v{vl}
        v_lshlrev_b32 v{vt0}, 4, v{vt0}
        v_mov_b32 v{vt1}, 0x3f80
        v_lshlrev_b32 v{vt0}, v{vt0}, v{vt1}
        v_and_b32 v{vt1}, 2, v{vl}
        v_cmp_eq_u32 vcc, 0, v{vt1}
        v_cndmask_b32 v{CM+4}, 0, v{vt0}, vcc
        v_sub_u32 v{CM+5}, v{vt0}, v{CM+4}""")

    def stats(c):
        for d in range(16):
            r = XB + 16 * c + d
            p(f"v_dot2_f32_bf16 v{vS + 2*(d & 1)}, v{r}, s{sone}, v{vS + 2*(d & 1)}")
            p(f"v_dot2_f32_bf16 v{vS + 1 + 2*(d & 1)}, v{r}, v{r}, v{vS + 1 + 2*(d & 1)}")

    for c in range(4):
        p.wait(vm=("x", c))
        after_wait(c)
        ts.mark(f"x{c}")
        for sp in range(4):
            p(f"ds_read_b128 {v(XB + 16*c + 4*sp, 4)}, v{vXR+sp} offset:{4096*c}", lg=("x", c))
        if c > 0:
            stats(c - 1)
        p.wait(lg=("x", c))
    stats(3)
    p(f"""v_add_f32 v{vS}, v{vS}, v{vS+2}
        v_add_f32 v{vS+1}, v{vS+1}, v{vS+3}
        ds_write_b64 v{vB}, {v(vS, 2)} offset:{512*role}""")
    after_stats()
    p.lg = []
    p(f"""s_waitcnt lgkmcnt(0)
        s_barrier
        ds_read_b64 {v(vS+2, 2)}, v{vB} offset:{512*(1-role)}""", lg="st")
    after_bar()
    p.wait(lg="st")
    ts.mark("bar0")
    p(f"""v_add_f32 v{vS}, v{vS}, v{vS+2}
        v_add_f32 v{vS+2}, v{vS+1}, v{vS+3}
        v_mov_b32 v{vS+1}, v{vS}
        v_mov_b32 v{vS+3}, v{vS+2}
        v_permlane32_swap_b32 v{vS}, v{vS+1}
        v_permlane32_swap_b32 v{vS+2}, v{vS+3}
        v_add_f32 v{vS}, v{vS}, v{vS+1}
        v_add_f32 v{vS+2}, v{vS+2}, v{vS+3}
        v_mul_f32 v{CM}, {f32hex(-1/512)}, v{vS}
        v_mul_f32 v{CM+1}, {f32hex(-1/512)}, v{vS}
        v_mul_f32 v{CM+2}, {f32hex(-1/512)}, v{vS}
        v_mul_f32 v{CM+3}, {f32hex(-1/512)}, v{vS}""")
    return [f"v_mul_f32 v{vS+2}, {f32hex(1/512)}, v{vS+2}", f"v_fma_f32 v{vS+2}, -v{CM}, v{CM}, v{vS+2}",
            f"v_max_f32 v{vS+2}, 0, v{vS+2}", f"v_add_f32 v{vS+2}, {f32hex(1e-5)}, v{vS+2}", f"v_rsq_f32 v{vA}, v{vS+2}"]


def center_ops(frags, D, CM):
    stages = []
    for i in range(len(frags) + 1):
        ops = []
        if i < len(frags):
            r, d = X + 4 * frags[i], D + 8 * (i & 1)
            ops += [f"v_mfma_f32_4x4x4_16b_bf16 {v(d + 4*k, 4)}, {v(CM+4, 2)}, {v(r + 2*k, 2)}, {v(CM, 4)}" for k in range(2)]
        if i > 0:
            r, d = X + 4 * frags[i - 1], D + 8 * ((i - 1) & 1)
            ops += [f"v_cvt_pk_bf16_f32 v{r+k}, v{d + 2*k}, v{d + 2*k + 1}" for k in range(4)]
        stages.append(ops)
    return stages


def prologue(p, ts, cfg):
    ts.mark()
    p("s_load_dwordx16 s[4:19], s[0:1], 0\ns_load_dwordx4 s[20:23], s[0:1], 64")
    p("s_cmp_ge_u32 s2, 256\ns_cbranch_scc1 fz_exit")
    p(f"v_lshrrev_b32 v{vt0}, 6, v0\nv_and_b32 v{vl}, 63, v0\nv_readfirstlane_b32 s{scnt}, v{vt0}")
    if cfg["map"] == "8x4":
        p(f"""s_and_b32 s{stb}, s2, 1
            s_lshl_b32 s{stb}, s{stb}, 3
            s_bfe_u32 s{st}, s2, 0x30003
            s_add_u32 s{stb}, s{stb}, s{st}
            s_bfe_u32 s{sj}, s2, 0x20001
            s_lshl_b32 s{sj}, s{sj}, 2
            s_lshr_b32 s{st}, s2, 6
            s_add_u32 s{sj}, s{sj}, s{st}
            s_lshl_b32 s{srot}, s{sj}, 1
            s_add_u32 s{srot}, s{srot}, s{stb}""")
    else:
        p(f"""s_and_b32 s{stb}, s2, 3
            s_lshl_b32 s{stb}, s{stb}, 2
            s_bfe_u32 s{st}, s2, 0x20003
            s_add_u32 s{stb}, s{stb}, s{st}
            s_bfe_u32 s{sj}, s2, 0x10002
            s_lshl_b32 s{sj}, s{sj}, 3
            s_lshr_b32 s{st}, s2, 5
            s_add_u32 s{sj}, s{sj}, s{st}
            s_lshl_b32 s{srot}, s{stb}, 1
            s_add_u32 s{srot}, s{srot}, s{sj}""")
    p(f"""s_and_b32 s{sw}, s{scnt}, 3
        s_lshl_b32 s{sm0x}, s{scnt}, 14
        s_lshl_b32 s{sFl}, s{stb}, 4
        s_add_u32 s{sFl}, s{sFl}, s{sj}
        s_lshl_b32 s{sFl}, s{sFl}, 7
        s_add_u32 s{sFl}, s{sFl}, {WS_F}
        s_lshl_b32 s{st2}, s{stb}, 2
        s_add_u32 s{st2}, s{st2}, s{sw}
        s_lshl_b32 s{st2}, s{st2}, 15
        s_mov_b32 s{sone}, 0x3f803f80
        s_cmp_ge_u32 s{scnt}, 4
        s_cbranch_scc1 fz_role_b""")


def build(prof=False, **kw):
    import fused_a, fused_b
    cfg = dict(CFG); cfg.update(kw)
    name = "parallel_sum__softmax_full_mha__glu_gated_reglu__prompt_kernel"
    p = Prog(name)
    ts = Stamps(p, prof, 0, 8)
    prologue(p, ts, cfg)
    ts.names = cfg["ma"].split("+")
    fused_a.role_a(p, ts, cfg)
    p.vm, p.lg, ts.n = [], [], 1
    ts.names = cfg["mb"].split("+")
    p.label("fz_role_b")
    fused_b.role_b(p, ts, cfg)
    p.label("fz_exit")
    p("s_endpgm")
    return (p, 256, 0), (name, 256, 512, LDS)
```

```python
from fused import *

vX, vW, vXR, vWR, vS, vA, vB, vF, vXN = 5, 9, 11, 15, 18, 22, 23, 24, 25
vT, WF, ACC = 28, 36, 68
T, P, Q, S, KV, O = 28, 36, 44, 60, 120, 192
NB = 6
CD, CM = 100, 116
sm0w, sOff, sEx, shead, sks = 66, 67, 68, 70, 71


def kv_lds(c, sp, m):
    return (R2 + 8192 * c + 2048 * sp if c < 3 else 16384 * sp + 2048 * (c - 3)) + 1024 * m


def q_lds(c, sp):
    return 16384 * sp + (10240 + 1024 * c if c < 6 else 1024 * (c - 6))


def role_a(p, ts, cfg):
    p(f"s_setprio {cfg['prioA0']}")
    x_addr(p, vX, vXR, 0)
    p(f"""s_cmp_eq_u32 s{sw}, 0
        s_cselect_b32 s{st}, 0, 0x7fff0000
        v_lshlrev_b32 v{vF}, 4, v{vl}
        v_add_u32 v{vT}, s{st}, v{vF}
        v_mov_b32 v{vT+1}, 1""")
    for r in range(4):
        p(f"v_mov_b32 v{vT+4+r}, 0")
    p("s_waitcnt lgkmcnt(0)")
    p.srd(sS, 22, WS_BYTES); p.srd(sX, 4, 2 * MB)
    p(f"""s_mov_b64 exec, 0xff
        buffer_store_dwordx4 {v(vT+4, 4)}, v{vT}, s[{sS}:{sS+3}], s{sFl} offen sc1
        s_mov_b64 exec, -1""", vm="clr")
    x_dma(p, vX, range(cfg["xpace"]))
    p.srd(sW, 6, 512 * 3072); p.srd(sU, 20, 256)
    for c in range(8):
        p(f"""s_add_u32 s{st}, s{srot}, {c}
            s_and_b32 s{st}, s{st}, 7
            s_mul_i32 s{sWo+c}, s{st}, 196608""")
    p(f"""s_lshl_b32 s{st}, s{sw}, 4
        v_lshrrev_b32 v{vt0}, 2, v{vl}
        v_add_u32 v{vt0}, s{st}, v{vt0}
        v_mul_u32_u24 v{vt0}, 3072, v{vt0}
        v_and_b32 v{vt1}, 3, v{vl}
        v_lshl_add_u32 v{vt0}, v{vt1}, 4, v{vt0}
        s_lshl_b32 s{st}, s{sj}, 6
        v_add_u32 v{vW}, s{st}, v{vt0}
        v_add_u32 v{vW+1}, 1024, v{vW}
        s_lshl_b32 s{sm0w}, s{sw}, 11
        s_add_u32 s{sm0w}, s{sm0w}, {R2}""")

    def kvdma(c):
        p(f"s_add_u32 m0, s{sm0w}, {8192*c}" if c < 3 else f"s_add_u32 m0, s{sm0x}, {2048*(c-3)}")
        for m in range(2):
            p(f"buffer_load_dwordx4 v{vW+1}, s[{sW}:{sW+3}], s{sWo+c} offen offset:{1024*m} lds", vm=("kv", c))

    def qdma(c):
        p(f"s_add_u32 m0, s{sm0x}, {q_lds(c, 0)}")
        p(f"buffer_load_dwordx4 v{vW}, s[{sW}:{sW+3}], s{sWo+c} offen lds", vm=("q", c))

    x_read_addr(p, vXR)
    p(f"""v_lshrrev_b32 v{vt0}, 5, v{vl}
        v_lshlrev_b32 v{vt0}, 9, v{vt0}
        v_bfe_u32 v{vt1}, v{vl}, 2, 2
        v_lshl_add_u32 v{vt0}, v{vt1}, 6, v{vt0}
        v_bfe_u32 v{vt1}, v{vl}, 4, 1
        v_lshl_add_u32 v{vt0}, v{vt1}, 5, v{vt0}
        v_and_b32 v{vt1}, 3, v{vl}
        v_lshl_add_u32 v{vWR}, v{vt1}, 3, v{vt0}
        v_add_u32 v{vWR+1}, {R2}, v{vWR}
        s_add_u32 s{st}, s{sm0x}, {R1}
        v_add_u32 v{vXN}, s{st}, v{vF}""")

    def after_wait(c):
        if c + cfg["xpace"] < 4:
            x_dma(p, vX, [c + cfg["xpace"]])

    def after_stats():
        p(f"""s_lshl_b32 s{st}, s{sj}, 4
            s_mov_b64 exec, 1
            buffer_atomic_add v{vT+1}, v{vT}, s[{sU}:{sU+3}], s{st} offen sc1
            s_mov_b64 exec, -1""", vm="cnt")
        for k in range(cfg["kvpre"]):
            kvdma(k)

    rs = x_stats(p, ts, X, vXR, vS, vA, vB, CM, 0, after_wait, after_stats, lambda: p(f"s_setprio {cfg['prioA']}"))
    stages = center_ops(range(16), CD, CM)

    def lds_ref(addr):
        return (vWR + 1, addr - R2) if addr >= R2 else (vWR, addr)

    def wread(ks, m):
        b, off = lds_ref(kv_lds(ks // 4, ks % 4, m))
        r = WF + 8 * (ks % 4) + 4 * m
        p(f"ds_read_b64_tr_b16 {v(r, 2)}, v{b} offset:{off}", lg=("w", ks))
        p(f"ds_read_b64_tr_b16 {v(r+2, 2)}, v{b} offset:{off+256}", lg=("w", ks))

    PRE = cfg["prenorm"]
    dmas = [(kvdma, c) for c in range(cfg["kvpre"], 8)] + [(qdma, c) for c in range(6)]
    for i in range(PRE + 1):
        for o in stages.pop(0):
            p(o)
        if i == 0:
            for o in rs:
                p(o)
            p(f"""s_lshl_b32 s{st}, s{sw}, 7
                s_add_u32 s{st}, s{st}, {RSTD}
                v_and_b32 v{vt0}, 31, v{vl}
                v_lshl_add_u32 v{vt0}, v{vt0}, 2, s{st}
                v_lshrrev_b32 v{vt1}, 5, v{vl}
                v_lshl_add_u32 v{vB}, v{vt1}, 4, s{st}
                ds_write_b32 v{vt0}, v{vA}""")
        if i == 1:
            p("s_barrier")
        if i >= 1:
            f, c = dmas.pop(0)
            f(c)
    p.wait(vm=("kv", 1))
    p("s_barrier")
    ts.mark("bar1")
    for ks in range(2):
        wread(ks, 0); wread(ks, 1)
    for ks in range(32):
        nxt = stages.pop(0) if stages else []
        if ks < 30 and (ks + 2) % 8 == 0:
            p.wait(vm=("kv", (ks + 2) // 4 + 1))
            p("s_barrier")
            ts.mark(f"bar{(ks + 2) // 8 + 1}")
            if ks == 22:
                qdma(6); qdma(7)
        p.wait(lg=("w", ks))
        if ks >= 16:
            p.wait(lg=("xn", ks))
        xf = v(X + 4 * ks, 4)
        for m in range(2):
            wf, acc = v(WF + 8 * (ks % 4) + 4 * m, 4), v(ACC + 16 * m, 16)
            c_in = "0" if ks == 0 else acc
            p(mfma(acc, wf, xf, c_in) if m == 0 else mfma(acc, xf, wf, c_in))
            if ks + 2 < 32:
                wread(ks + 2, m)
            if m == 0 and 14 <= ks < 30:
                p(f"ds_read_b128 {v(X + 4*(ks+2), 4)}, v{vXN} offset:{1024*(ks-14)}", lg=("xn", ks + 2))
            if m == 1 and dmas:
                f, c = dmas.pop(0)
                f(c)
            for o in (nxt[-4:] if m == 0 else nxt[:-4]):
                p(o)
            if ks >= 28 and m == 1:
                p(f"ds_read_b128 {v(CD + 4*(ks-28), 4)}, v{vB} offset:{32*(ks-28)}", lg="rs")
    ts.mark("kvend")
    sKo, sVo = sXo, sXo + 2
    vV = vX
    p(f"""s_lshl_b32 s{st}, s{sj}, 5
        s_add_u32 s{st}, s{st}, s{stb}
        s_lshl_b32 s{st}, s{st}, 2
        s_add_u32 s{st}, s{st}, s{sw}
        s_lshl_b32 s{st}, s{st}, 10
        s_add_u32 s{sKo}, s{st}, {WS_K}
        s_add_u32 s{sKo+1}, s{st}, {WS_K + 65536}
        s_add_u32 s{sVo}, s{st}, {WS_V}
        v_lshrrev_b32 v{vt1}, 5, v{vl}
        v_lshlrev_b32 v{vt1}, 8, v{vt1}
        v_and_b32 v{vt0}, 15, v{vl}
        v_lshl_add_u32 v{vV}, v{vt0}, 4, v{vt1}
        v_bfe_u32 v{vt0}, v{vl}, 4, 1
        v_lshl_add_u32 v{vV+1}, v{vt0}, 16, v{vV}
        v_lshl_add_u32 v{vV+2}, v{vt0}, 10, v{vV}
        v_add_u32 v{vV+2}, s{sm0x}, v{vV+2}
        v_add_u32 v{vV+3}, s{sm0x}, v{vF}
        v_and_b32 v{vt0}, 15, v{vl}
        v_lshlrev_b32 v{vXR}, 4, v{vt0}""")
    p.wait(lg="rs")
    for m in range(2):
        for hf in range(2):
            d = 60 + 8 * m + 4 * hf
            for k in range(4):
                r = ACC + 16 * m + 8 * hf + 2 * k
                if m == 0:
                    p(f"v_pk_mul_f32 {v(r, 2)}, {v(r, 2)}, {v(vA, 2)} op_sel_hi:[1,0]")
                else:
                    p(f"v_pk_mul_f32 {v(r, 2)}, {v(r, 2)}, {v(CD + 8*hf + 2*k, 2)}")
            for k in range(4):
                r = ACC + 16 * m + 8 * hf + 2 * k
                p(f"v_cvt_pk_bf16_f32 v{d+k}, v{r}, v{r+1}")
            if m == 0:
                p(f"buffer_store_dwordx4 {v(d, 4)}, v{vF}, s[{sS}:{sS+3}], s{sKo+hf} offen sc1", vm="st")
            else:
                p(f"buffer_store_dwordx4 {v(d, 4)}, v{vV+1}, s[{sS}:{sS+3}], s{sVo} offen offset:{512*hf} sc1", vm="st")
    p(f"buffer_load_dword v{vXR+1}, v{vXR}, s[{sU}:{sU+3}], 0 offen sc1", vm="cntld")
    p.wait(vm=("q", 5), lg="all")
    p("s_barrier")
    ts.mark("bar5")

    def qread(ks):
        b, off = lds_ref(q_lds(ks // 4, ks % 4))
        r = WF + 4 * (ks % 6)
        p(f"ds_read_b64_tr_b16 {v(r, 2)}, v{b} offset:{off}", lg=("w", ks))
        p(f"ds_read_b64_tr_b16 {v(r+2, 2)}, v{b} offset:{off+256}", lg=("w", ks))

    QD, Q2 = 4, 76
    vK, vVg, vP, vQ, vVl = vF + 2, vF + 3, vXR + 2, vW, vW + 1
    setup = (f"""v_mul_f32 v{vA}, {f32hex(QSCALE)}, v{vA}
        s_and_b32 s{shead}, s{sw}, 1
        s_lshr_b32 s{sks}, s{sw}, 1
        s_lshl_b32 s{st}, s{shead}, 10
        s_lshl_b32 s{st2}, s{sks}, 15
        s_add_u32 s{st}, s{st}, s{st2}
        v_add_u32 v{vQ}, s{st}, v{vF}
        v_add_u32 v{vVl}, s{st}, v{vV}
        v_xor_b32 v{vXN}, 0x8000, v{vQ}
        s_lshl_b32 s{st}, s{sj}, 1
        s_add_u32 s{shead}, s{shead}, s{st}
        s_lshl_b32 s{st}, s{shead}, 16
        s_add_u32 s{st2}, s{st}, {WS_K}
        v_add_u32 v{vK}, s{st2}, v{vF}
        s_add_u32 s{st2}, s{st}, {WS_V}
        v_add_u32 v{vVg}, s{st2}, v{vV}
        s_add_u32 s{sOff}, s{stb}, 1
        s_and_b32 s{sOff}, s{sOff}, 15
        s_lshl_b32 s{sOff}, s{sOff}, 1
        s_add_u32 s{sOff}, s{sOff}, s{sks}
        s_lshl_b32 s{sOff}, s{sOff}, 11
        s_mov_b32 s{sEx}, 0x0000ffff
        s_mov_b32 s{sEx+1}, 0x0000ffff
        v_bfe_u32 v{vt0}, v{vl}, 1, 4
        v_lshlrev_b32 v{vt0}, 11, v{vt0}
        v_and_b32 v{vt1}, 1, v{vl}
        v_lshl_add_u32 v{vt0}, v{vt1}, 2, v{vt0}
        s_lshl_b32 s{st}, s{sj}, 7
        s_lshl_b32 s{st2}, s{sks}, 3
        s_add_u32 s{st}, s{st}, s{st2}
        s_add_u32 s{st}, s{st}, {WS_F}
        v_add_u32 v{vP}, s{st}, v{vt0}""").split("\n")
    for ks in range(QD):
        qread(ks)
    ones = [f"v_mov_b32 v{KV + 12*b + 4 + r}, s{sone}" for b in range(NB) for r in range(8)]
    for ks in range(32):
        if ks + QD == 24:
            p.wait(vm=("q", 7))
            p("s_barrier")
        p.wait(lg=("w", ks))
        acc = v(ACC + 32 if ks % 2 == 0 else Q2, 16)
        p(mfma(acc, v(WF + 4 * (ks % 6), 4), v(X + 4 * ks, 4), "0" if ks < 2 else acc))
        if ks + QD < 32:
            qread(ks + QD)
        if ks < 2:
            p(f"ds_write_b128 v{vV+3}, {v(60 + 4*ks, 4)} offset:{4096 + 1024*ks}", lg="ex")
        elif ks < 4:
            p(f"ds_write_b128 v{vV+2}, {v(68 + 4*(ks-2), 4)} offset:{6144 + 512*(ks-2)}", lg="ex")
        if 4 <= ks < 18:
            for o in setup[3 * (ks - 4):3 * (ks - 4) + 3]:
                p(o)
        if ks >= 18:
            for o in ones[4 * (ks - 18):4 * (ks - 18) + 4]:
                p(o)
    ts.mark("qend")
    p.wait(vm="st")
    ts.mark("stack")
    set_flag(p, 0, vt0, vt1)
    for r in range(0, 16, 2):
        p(f"v_pk_add_f32 {v(ACC+32+r, 2)}, {v(Q2+r, 2)}, {v(ACC+32+r, 2)}")
    for r in range(0, 16, 2):
        p(f"v_pk_mul_f32 {v(ACC+32+r, 2)}, {v(ACC+32+r, 2)}, {v(vA, 2)} op_sel_hi:[1,0]")
    for hf in range(2):
        d = ACC + 32 + 4 * hf
        for k in range(4):
            p(f"v_cvt_pk_bf16_f32 v{d+k}, v{ACC + 32 + 8*hf + 2*k}, v{ACC + 32 + 8*hf + 2*k + 1}")
        p(f"ds_write_b128 v{vV+3}, {v(d, 4)} offset:{8192 + 1024*hf}", lg="ex")
    p.wait(vm="cntld")
    p(f"v_cmp_ne_u32 vcc, 16, v{vXR+1}\ns_cbranch_vccz fa_cnt_skip")
    vm_keep = list(p.vm)
    poll(p, "fa_cnt", sU, vXR, "0", vXR + 1, 16)
    p.label("fa_cnt_skip")
    p.vm = vm_keep
    p.wait(lg="all")
    p("s_barrier")
    ts.mark("bar7")
    p(f"ds_read_b128 {v(KV, 4)}, v{vQ} offset:4096", lg="k0")
    for jj in range(4):
        p(f"ds_read_b128 {v(Q + 4*jj, 4)}, v{vXN if jj < 2 else vQ} offset:{8192 + 16384*(jj & 1)}", lg=("q", jj))
    p(f"ds_read_b128 {v(KV + 12, 4)}, v{vQ} offset:{4096 + 16384}", lg="v")
    p(f"s_mov_b64 exec, s[{sEx}:{sEx+1}]")
    for b in range(2):
        for f in range(2):
            p(f"ds_read_b128 {v(KV + 12*b + 4 + 4*f, 4)}, v{vVl} offset:{6144 + 16384*b + 512*f}", lg="v")
    p("s_mov_b64 exec, -1")
    p(f"buffer_load_dword v{vP+1}, v{vP}, s[{sS}:{sS+3}], 0 offen sc1", vm="poll")
    p.wait(lg=("q", 0))
    p(mfma(v(S, 16), v(KV, 4), v(Q, 4), "0"))
    p(f"""s_lshl_b32 s{st}, s{sw}, 2
        s_add_u32 s{st}, s{st}, {SYNC}
        v_mov_b32 v{vt0}, s{st}
        v_mov_b32 v{vt1}, 64""")
    p.wait(lg="all")
    p(f"ds_write_b32 v{vt0}, v{vt1}")

    def kvload(b):
        p(f"buffer_load_dwordx4 {v(KV + 12*b, 4)}, v{vK}, s[{sS}:{sS+3}], s{sOff} offen sc1", vm=("b", b))
        p(f"s_mov_b64 exec, s[{sEx}:{sEx+1}]")
        p(f"buffer_load_dwordx4 {v(KV + 12*b + 4, 4)}, v{vVg}, s[{sS}:{sS+3}], s{sOff} offen sc1", vm=("b", b))
        p(f"buffer_load_dwordx4 {v(KV + 12*b + 8, 4)}, v{vVg}, s[{sS}:{sS+3}], s{sOff} offen offset:512 sc1", vm=("b", b))
        p("s_mov_b64 exec, -1")

    def kvadv(b):
        if b % 2 == 0:
            return [f"s_add_u32 s{sOff}, s{sOff}, 1024"]
        return [f"s_add_u32 s{sOff}, s{sOff}, 3072", f"s_and_b32 s{sOff}, s{sOff}, 0xffff"]

    cprev = f"v_cvt_pk_bf16_f32 v{P + 7}, v{T + 14 % 6}, v{T + 14 % 6 + 1}"

    def tile(j, b, step0, extra):
        cur, nxt = S + 16 * (j & 1), S + 16 * ((j + 1) & 1)
        e = lambda k: f"v_exp_f32 v{T + k % 6}, v{cur + k}"
        c = lambda k: f"v_cvt_pk_bf16_f32 v{P + k // 2}, v{T + k % 6}, v{T + k % 6 + 1}"
        run = lambda ops: [o() if callable(o) else p(o) for o in ops]
        first = step0 and j == 0
        jp, bp = (j - 1) % 4, (b if j > 0 else (b - 1) % NB)
        jn, bn = (j + 1) % 4, (b if j < 3 else (b + 1) % NB)
        p(mfma(v(nxt, 16), v(KV + 12 * bn, 4), v(Q + 4 * jn, 4), "0"))
        run(extra[0])
        if not first:
            p(cprev)
        run((e(0), e(1), e(2), c(0), e(3), e(4), c(2)))
        if not first:
            p(mfma(v(O + 16 * jp, 16), v(KV + 12 * bp + 8, 4), v(P + 4, 4), v(O + 16 * jp, 16)))
        run(extra[1])
        run((e(5), e(6), c(4), e(7), e(8), c(6), e(9), e(10)))
        p(mfma(v(O + 16 * j, 16), v(KV + 12 * b + 4, 4), v(P, 4), "0" if step0 else v(O + 16 * j, 16)))
        run(extra[2])
        run((c(8), e(11), e(12), c(10), e(13), e(14), c(12), e(15)))

    def step(b, step0=False, tail=None):
        for j in range(4):
            extra = [[], [], []]
            if j == 0 and not step0:
                extra[1] = [lambda: kvload((b - 1) % NB)]
                extra[2] = kvadv((b - 1) % NB)[:1]
            if j == 1 and not step0:
                extra[0] = kvadv((b - 1) % NB)[1:]
            if j == 2 and not step0:
                extra[2] = [lambda: p.wait(vm=("b", (b + 1) % NB))]
            if j == 3 and tail:
                extra[1] = tail[:1]; extra[2] = tail[1:]
            tile(j, b, step0, extra)

    step(0, step0=True)
    ts.mark("step0")
    poll(p, "fa_kv", sS, vP, "0", vP + 1, 1, first_issued=True)
    ts.mark("kvpoll")
    for b in range(2, NB):
        kvload(b)
        for o in kvadv(b):
            p(o)
    step(1)
    ts.mark("loop0")
    p(f"s_mov_b32 s{scnt}, {30 // NB}")
    p(".p2align 6")
    p.label("fa_loop")
    if ts.on and "iters" in ts.names:
        for i in range(5):
            p(f"s_cmp_lg_u32 s{scnt}, {5 - i}\ns_cbranch_scc1 fa_it{i}")
            ts.mark()
            p.label(f"fa_it{i}")
    vm0 = list(p.vm)
    for i in range(NB):
        step((2 + i) % NB, tail=[f"s_sub_u32 s{scnt}, s{scnt}, 1", f"s_cmp_lg_u32 s{scnt}, 0"] if i == NB - 1 else None)
    assert p.vm == vm0, (p.vm, vm0)
    p("s_cbranch_scc1 fa_loop")
    p(cprev)
    p(mfma(v(O + 48, 16), v(KV + 12 + 8, 4), v(P + 4, 4), v(O + 48, 16)))
    ts.mark("loop1")
    vRW, vRW1 = vX, vX + 1
    p(f"""s_mul_i32 s{st}, s{sw}, {2*RED_TILE}
        s_add_u32 s{st}, s{st}, {OX}
        v_add_u32 v{vRW}, s{st}, v{vF}
        v_lshl_add_u32 v{vRW1}, v{vl}, 2, s{st}""")
    for t in range(2):
        p(f"ds_write_b128 v{vRW}, {v(O + 16*t, 4)} offset:{RED_TILE*t}")
        p(f"ds_write_b128 v{vRW}, {v(O + 16*t + 4, 4)} offset:{RED_TILE*t + 1024}")
        p(f"ds_write_b32 v{vRW1}, v{O + 16*t + 8} offset:{RED_TILE*t + 2048}")
    sLo, sHi, sBad, sOo = 72, 73, 74, 76
    p(f"""s_xor_b32 s{st}, s{sw}, 2
        s_mul_i32 s{st}, s{st}, {2*RED_TILE}
        s_add_u32 s{st}, s{st}, {OX}
        v_add_u32 v{vRW+2}, s{st}, v{vF}
        v_lshl_add_u32 v{vRW+3}, v{vl}, 2, s{st}
        s_mov_b32 s{sLo}, {f32hex(2.0**-60)}
        s_mov_b32 s{sHi}, {f32hex(2.0**60)}
        s_lshl_b32 s{sOo}, s{stb}, 1
        s_add_u32 s{sOo}, s{sOo}, s{sks}
        s_lshl_b32 s{sOo}, s{sOo}, 6
        s_add_u32 s{sOo}, s{sOo}, s{shead}
        s_lshl_b32 s{sOo}, s{sOo}, 10
        s_add_u32 s{sOo}, s{sOo}, {WS_O}
        s_add_u32 s{sOo+1}, s{sOo}, 32768
        s_waitcnt lgkmcnt(0)
        s_barrier""")
    p.lg = []
    ts.mark("barx")
    for t in range(2):
        o = S + 12 * t
        p(f"ds_read_b128 {v(o, 4)}, v{vRW+2} offset:{RED_TILE*t}", lg=t)
        p(f"ds_read_b128 {v(o + 4, 4)}, v{vRW+2} offset:{RED_TILE*t + 1024}", lg=t)
        p(f"ds_read_b32 v{o + 8}, v{vRW+3} offset:{RED_TILE*t + 2048}", lg=t)
    for t in range(2):
        p.wait(lg=t)
        for r in range(9):
            p(f"v_add_f32 v{O + 32 + 16*t + r}, v{O + 32 + 16*t + r}, v{S + 12*t + r}")
    for t in range(2):
        R = O + 32 + 16 * t
        p(f"v_max3_f32 v{vt0}, |v{R}|, |v{R+1}|, |v{R+8}|")
        for r in range(2, 8, 2):
            p(f"v_max3_f32 v{vt0}, v{vt0}, |v{R+r}|, |v{R+r+1}|")
        p(f"v_add_f32 v{vt1}, v{R}, v{R+1}")
        for r in range(2, 8, 2):
            p(f"v_add_f32 v{vt2}, v{R+r}, v{R+r+1}\nv_add_f32 v{vt1}, v{vt1}, v{vt2}")
        p(f"""v_cmp_nge_f32 vcc, s{sHi}, v{vt0}
            v_cmp_nle_f32 s[{sBad}:{sBad+1}], s{sLo}, v{R+8}
            s_or_b64 vcc, vcc, s[{sBad}:{sBad+1}]
            v_cmp_u_f32 s[{sBad}:{sBad+1}], v{vt1}, v{vt1}
            s_or_b64 vcc, vcc, s[{sBad}:{sBad+1}]
            s_cbranch_vccnz fa_fb{t}""")
        p.label(f"fa_ok{t}")
        p(f"v_rcp_f32 v{R+8}, v{R+8}")
        for r in range(8):
            p(f"v_mul_f32 v{R+r}, v{R+r}, v{R+8}")
        for k in range(4):
            p(f"v_cvt_pk_bf16_f32 v{R+k}, v{R+2*k}, v{R+2*k+1}")
        p(f"buffer_store_dwordx4 {v(R, 4)}, v{vF}, s[{sS}:{sS+3}], s{sOo+t} offen sc1")
    ts.mark("ost")
    p("s_waitcnt vmcnt(0)")
    ts.mark("oack")
    set_flag(p, 8, vt0, vt1)
    if ts.on:
        p(f"s_lshr_b32 s{st2}, s{sm0x}, 14")
    ts.flush(sS, f"s{st2}", 2)
    p("s_endpgm")
    for t in range(2):
        p.label(f"fa_fb{t}")
        fallback(p, t, O + 32 + 16 * t, Q + 8 + 4 * t, vK, vVg)
        p(f"s_branch fa_ok{t}")


def fallback(p, t, R, Qf, vK, vV):
    sa, sc = 78, 79
    Kf, Vf, Sx, C, Pf, M = KV, KV + 4, KV + 12, KV + 28, KV + 44, KV + 52
    p(f"""s_waitcnt vmcnt(0)
        s_mov_b32 s{sa}, 0
        v_mov_b32 v{M}, 0xff7fffff""")
    p.label(f"fa_fb_max{t}")
    p(f"buffer_load_dwordx4 {v(Kf, 4)}, v{vK}, s[{sS}:{sS+3}], s{sa} offen sc1\ns_waitcnt vmcnt(0)")
    p(mfma(v(Sx, 16), v(Kf, 4), v(Qf, 4), "0"))
    p(f"s_add_u32 s{sa}, s{sa}, 1024\ns_cmp_lg_u32 s{sa}, 0x10000")
    for r in range(0, 16, 2):
        p(f"v_max3_f32 v{M}, v{M}, v{Sx+r}, v{Sx+r+1}")
    p(f"s_cbranch_scc1 fa_fb_max{t}")
    p(f"""v_mov_b32 v{M+1}, v{M}
        v_permlane32_swap_b32 v{M}, v{M+1}
        v_max_f32 v{M}, v{M}, v{M+1}
        s_mov_b32 s{sa}, 0""")
    for r in range(16):
        p(f"v_mov_b32 v{C+r}, 0")
    for r in range(8):
        p(f"v_mov_b32 v{Vf+r}, 0x3f803f80")
    p.label(f"fa_fb_pv{t}")
    p(f"""buffer_load_dwordx4 {v(Kf, 4)}, v{vK}, s[{sS}:{sS+3}], s{sa} offen sc1
        s_mov_b64 exec, s[{sEx}:{sEx+1}]
        buffer_load_dwordx4 {v(Vf, 4)}, v{vV}, s[{sS}:{sS+3}], s{sa} offen sc1
        buffer_load_dwordx4 {v(Vf+4, 4)}, v{vV}, s[{sS}:{sS+3}], s{sa} offen offset:512 sc1
        s_mov_b64 exec, -1
        s_waitcnt vmcnt(0)""")
    p(mfma(v(Sx, 16), v(Kf, 4), v(Qf, 4), "0"))
    p(f"s_add_u32 s{sa}, s{sa}, 1024\ns_cmp_lg_u32 s{sa}, 0x10000")
    for r in range(16):
        p(f"v_sub_f32 v{Sx+r}, v{Sx+r}, v{M}")
    for r in range(16):
        p(f"v_exp_f32 v{Sx+r}, v{Sx+r}")
    for k in range(8):
        p(f"v_cvt_pk_bf16_f32 v{Pf+k}, v{Sx+2*k}, v{Sx+2*k+1}")
    p(mfma(v(C, 16), v(Vf, 4), v(Pf, 4), v(C, 16)))
    p(mfma(v(C, 16), v(Vf + 4, 4), v(Pf + 4, 4), v(C, 16)))
    p(f"s_nop 7\ns_cbranch_scc1 fa_fb_pv{t}")
    for r in range(9):
        p(f"v_mov_b32 v{R+r}, v{C+r}")
    p("s_nop 1")
    p.vm = []
```

```python
from fused import *

vD, vR, vSy, vF = 5, 8, 10, 11
WF, ACC = 12, 32
sm0, sHo, sk, sWb, sHb, sth, snt, sumax = 66, 67, 68, 69, 70, 71, 72, 73


vSw, vOne = 4, 3


def sw_signal(p):
    p(f"""s_mov_b64 exec, 1
        ds_add_u32 v{vSw}, v{vOne}
        s_mov_b64 exec, -1""", lg="sig")


def sw_wait(p, name, val, cfg):
    p(f"s_mov_b32 s{scnt}, {SPIN * 8}\ns_setprio 3")
    p.label(name)
    p(f"""ds_read_b32 v{vt0}, v{vSy}
        s_waitcnt lgkmcnt(0)
        v_cmp_gt_u32 vcc, {val}, v{vt0}
        s_cbranch_vccz {name}_ok
        s_sub_u32 s{scnt}, s{scnt}, 1
        s_cmp_lg_u32 s{scnt}, 0
        s_cbranch_scc1 {name}""")
    p.label(name + "_ok")
    p(f"s_setprio {cfg['prioB1']}")
    p.lg = []


def role_b(p, ts, cfg):
    vX, vXR, vS, vA, vB, vXN, vT = 32, 36, 40, 44, 45, 46, 48
    x_addr(p, vX, vXR, 4)
    p("s_waitcnt lgkmcnt(0)")
    p.srd(sX, 4, 2 * MB)
    x_dma(p, vX, range(cfg["xpace"]))
    p.srd(sS, 22, WS_BYTES); p.srd(sW, 12, 512 * 2752); p.srd(sU, 14, 512 * 2752); p.srd(sO, 18, 2 * MB)
    x_read_addr(p, vXR)
    p(f"""v_and_b32 v{vSy}, 7, v{vl}
        v_lshlrev_b32 v{vSy}, 2, v{vSy}
        v_add_u32 v{vSy}, {SYNC}, v{vSy}
        v_mov_b32 v{vt0}, 0
        ds_write_b32 v{vSy}, v{vt0}
        v_lshlrev_b32 v{vF}, 4, v{vl}
        v_add_u32 v{vXN}, s{sm0x}, v{vF}
        s_mul_i32 s{sm0}, s{sw}, 3072
        s_mul_i32 s{st}, s{sw}, {16*2752}
        s_mul_i32 s{st2}, s{sj}, 192
        s_add_u32 s{st}, s{st}, s{st2}""")
    for i in range(3):
        p(f"""v_add_u32 v{vt0}, {64*i}, v{vl}
            v_mul_u32_u24 v{vt1}, 21846, v{vt0}
            v_lshrrev_b32 v{vt1}, 18, v{vt1}
            v_mul_u32_u24 v{vt2}, {2752 - 192}, v{vt1}
            v_lshl_add_u32 v{vt2}, v{vl}, 4, v{vt2}
            v_add_u32 v{vD+i}, s{st}, v{vt2}""")
    p(f"""v_lshrrev_b32 v{vt0}, 5, v{vl}
        v_lshlrev_b32 v{vt0}, 3, v{vt0}
        v_bfe_u32 v{vt1}, v{vl}, 2, 2
        v_add_u32 v{vt0}, v{vt0}, v{vt1}
        v_mul_u32_u24 v{vt0}, 192, v{vt0}
        v_bfe_u32 v{vt1}, v{vl}, 4, 1
        v_mul_u32_u24 v{vt1}, 12320, v{vt1}
        v_add_u32 v{vt0}, v{vt0}, v{vt1}
        v_and_b32 v{vt1}, 3, v{vl}
        v_lshl_add_u32 v{vt0}, v{vt1}, 3, v{vt0}
        v_add_u32 v{vR}, {SLOTS[0]}, v{vt0}
        v_add_u32 v{vR+1}, 59392, v{vt0}
        v_mov_b32 v0, v{vt0}""")
    for c in range(8):
        p(f"""s_add_u32 s{st}, s{srot}, {c}
            s_and_b32 s{st}, s{st}, 7
            s_mul_i32 s{sWo+c}, s{st}, {64*2752}""")
    for sp in range(4):
        p(f"v_subrev_u32 v{vT+sp}, {R1}, v{vXR+sp}")
    CD, CM = 64, 80

    def after_wait(c):
        if c + cfg["xpace"] < 4:
            x_dma(p, vX, [c + cfg["xpace"]])

    def raw_read():
        for f in range(12):
            p(f"ds_read_b128 {v(X + 4*f, 4)}, v{vT + f % 4} offset:{4096*(f // 4)}", lg="raw")

    x_stats(p, ts, X + 64, vXR, vS, vA, vB, CM, 1, after_wait, lambda: None, raw_read)
    for f in range(12, 16):
        p(f"ds_read_b128 {v(X + 4*f, 4)}, v{vT + f % 4} offset:{4096*(f // 4)}", lg="raw")
    stages = center_ops(list(range(16, 32)) + list(range(16)), CD, CM)

    def gdma(c):
        for m, srd in enumerate((sW, sU)):
            p(f"s_add_u32 m0, s{sm0}, {SLOTS[c] + m*12320}")
            for i in range(3):
                p(f"buffer_load_dwordx4 v{vD+i}, s[{srd}:{srd+3}], s{sWo+c} offen offset:{1024*i} lds", vm=("w", c))

    for i, ops in enumerate(stages):
        for o in ops:
            p(o)
        if i == 0:
            p.wait(lg="raw")
            p("s_barrier")
        if 1 <= i <= 16:
            p(f"ds_write_b128 v{vXN}, {v(X + 4*(15 + i), 4)} offset:{1024*(i-1)}")
        if i in cfg["bnorm"]:
            p("s_barrier")
        if i == 16:
            p.wait(lg="all")
            p("s_barrier")
        if i == 24:
            p("s_barrier")
            if cfg["gu_first"] == 4:
                gdma(0)
    p("s_barrier")
    if cfg["gu_first"] == 5:
        gdma(0)
    gdma(1)
    p("s_barrier")
    p.wait(vm=("w", 0))
    p(f"""s_lshl_b32 s{st}, s{sw}, 2
        s_add_u32 s{st}, s{st}, {SYNC + 16}
        v_mov_b32 v{vSw}, s{st}
        v_mov_b32 v{vOne}, 1
        s_barrier
        s_setprio {cfg['prioB1']}""")
    ts.mark("bar7")
    p(f"s_cmp_eq_u32 s{sj}, 15\ns_cbranch_scc1 fb_gu_skip")
    sw_signal(p)
    gdma(2)

    def wread(n):
        ks, u = divmod(n, 6)
        c, sp = divmod(ks, 4)
        base, off = {R2: (vR, 0), 59392: (vR + 1, 0), 59392 + SLOT: (vR + 1, SLOT), 0: (0, 0), SLOT: (0, SLOT)}[SLOTS[c]]
        off += 3072 * sp + 32 * u
        r = WF + 4 * (n % 5)
        p(f"ds_read_b64_tr_b16 {v(r, 2)}, v{base} offset:{off}", lg=("w", n))
        p(f"ds_read_b64_tr_b16 {v(r+2, 2)}, v{base} offset:{off + 768}", lg=("w", n))

    def touch(i):
        p(f"""s_lshr_b32 s{st}, s2, 3
            s_lshl_b32 s{st}, s{st}, 2
            s_add_u32 s{st}, s{st}, s{sw}
            v_lshlrev_b32 v{vD}, 7, v{vl}""")
        if i == 0:
            p.srd(sW, 16, 1376 * 1024)
            p(f"""s_lshl_b32 s{st}, s{st}, 13
                buffer_load_dword v{X}, v{vD}, s[{sW}:{sW+3}], s{st} offen""", vm="touch")
        else:
            p.srd(sU, 8, 512 * 1024)
            p(f"""s_mul_i32 s{st2}, s{st}, 2816
                s_add_u32 s{st2}, s{st2}, 0x100000
                s_lshl_b32 s{st}, s{st}, 12
                s_mov_b64 exec, 0x3fffff
                buffer_load_dword v{X+1}, v{vD}, s[{sW}:{sW+3}], s{st2} offen
                s_mov_b32 exec_lo, -1
                buffer_load_dword v{X+2}, v{vD}, s[{sU}:{sU+3}], s{st} offen
                s_mov_b64 exec, -1""", vm="touch")

    D = 4
    for n in range(D):
        wread(n)
    for n in range(192):
        ks, u = divmod(n, 6)
        if n % 24 == 8 and n < 168:
            p.wait(vm=("w", n // 24 + 1))
            sw_signal(p)
        if (n + D) % 24 == 0 and n + D < 192:
            c = (n + D) // 24
            ts.mark(f"c{c}")
            sw_wait(p, f"fb_sw{c}", c + 1, cfg)
            ts.mark(f"sw{c}")
            if c + 2 < 8:
                gdma(c + 2)
            elif cfg["touch"]:
                touch(c - 6)
        p.wait(lg=("w", n))
        acc = v(ACC + 16 * u, 16)
        p(mfma(acc, v(WF + 4 * (n % 5), 4), v(X + 4 * ks, 4), "0" if ks == 0 else acc))
        if n + D < 192:
            wread(n + D)
    p(f"s_setprio {cfg['prioB2']}")
    sw_signal(p)
    p(f"""s_lshl_b32 s{st}, s{sw}, 7
        s_add_u32 s{st}, s{st}, {RSTD}
        v_and_b32 v{vt0}, 31, v{vl}
        v_lshl_add_u32 v{vt0}, v{vt0}, 2, s{st}
        ds_read_b32 v{WF}, v{vt0}
        s_waitcnt lgkmcnt(0)
        v_mul_f32 v{WF}, v{WF}, v{WF}""")
    p.lg = []
    ts.mark("guend")
    p(f"""s_lshl_b32 s{sHo}, s{stb}, 2
        s_add_u32 s{sHo}, s{sHo}, s{sw}
        s_mul_i32 s{sHo}, s{sHo}, 86
        s_mul_i32 s{st}, s{sj}, 6
        s_add_u32 s{sHo}, s{sHo}, s{st}
        s_lshl_b32 s{sHo}, s{sHo}, 10
        s_add_u32 s{sHo}, s{sHo}, {WS_H}
        s_add_u32 s{st2}, s{sHo}, 4096""")
    for u in range(6):
        A = ACC + 16 * u
        if u == 2:
            p(f"s_cmp_eq_u32 s{sj}, 14\ns_cbranch_scc1 fb_h_done")
        for r in range(8):
            p(f"v_max_f32 v{A+r}, 0, v{A+r}")
        for r in range(0, 8, 2):
            p(f"v_pk_mul_f32 {v(A+8+r, 2)}, {v(A+8+r, 2)}, {v(WF, 2)} op_sel_hi:[1,0]")
        for r in range(0, 8, 2):
            p(f"v_pk_mul_f32 {v(A+r, 2)}, {v(A+r, 2)}, {v(A+8+r, 2)}")
        for k in range(4):
            p(f"v_cvt_pk_bf16_f32 v{A+k}, v{A+2*k}, v{A+2*k+1}")
        p(f"buffer_store_dwordx4 {v(A, 4)}, v{vF}, s[{sS}:{sS+3}], s{sHo if u < 4 else st2} offen offset:{1024*(u % 4)} sc1", vm="h")
    p("s_branch fb_h_done")
    p.label("fb_gu_skip")
    p(f"v_mov_b32 v{vOne}, 9")
    if cfg["touch"]:
        keep = list(p.vm)
        touch(0); touch(1)
        p.vm = keep
    sw_signal(p)
    p.label("fb_h_done")
    ts.mark("hst")
    sw_wait(p, "fb_sw8", 9, dict(prioB1=cfg["prioB2"]))
    HF, WO, XR = 128, 192, 96
    vH, vO, vP, vXa, vRed = 104, 106, 108, 110, 111
    p.srd(sW, 16, 1376 * 1024); p.srd(sU, 8, 512 * 1024)
    p(f"""s_and_b32 s{sth}, s2, 7
        s_lshl_b32 s{sth}, s{sth}, 2
        s_bfe_u32 s{st}, s2, 0x20003
        s_add_u32 s{sth}, s{sth}, s{st}
        s_lshr_b32 s{snt}, s2, 5
        s_lshl_b32 s{st}, s{st}, 1
        s_add_u32 s{st}, s{st}, s{snt}
        s_mul_i32 s{sk}, s{st}, 3
        s_cmp_ge_u32 s{sk}, 22
        s_cselect_b32 s{st}, 22, 0
        s_sub_u32 s{sk}, s{sk}, s{st}
        s_mov_b32 s{sHo}, s{sk}
        s_mul_i32 s{sm0}, s{sw}, {RING*2048}
        s_mul_i32 s{sWb}, s{sw}, {22*16*1024}
        s_lshl_b32 s{st}, s{snt}, 7
        s_add_u32 s{sWb}, s{sWb}, s{st}
        s_mul_i32 s{sHb}, s{sw}, 22
        s_sub_u32 s{sumax}, 85, s{sHb}
        s_mul_i32 s{st}, s{sth}, 172
        s_add_u32 s{sHb}, s{sHb}, s{st}
        s_lshl_b32 s{sHb}, s{sHb}, 10
        s_add_u32 s{sHb}, s{sHb}, {WS_H}""")
    w128_dma_addr(p, vD, vl, vt0, vt1)
    p(f"v_add_u32 v{vD+1}, 7168, v{vD}")

    def wdma(k):
        p(f"s_add_u32 m0, s{sm0}, {2048*(k % RING)}")
        if k < 22:
            p(f"""s_lshl_b32 s{st}, s{sk}, 14
                s_add_u32 s{st}, s{st}, s{sWb}
                s_add_u32 s{sk}, s{sk}, 1
                s_cmp_eq_u32 s{sk}, 22
                s_cselect_b32 s{sk}, 0, s{sk}""")
        else:
            p(f"""s_lshl_b32 s{st}, s{sw}, 17
                s_lshl_b32 s{st2}, s{snt}, 7
                s_add_u32 s{st}, s{st}, s{st2}
                s_add_u32 s{st}, s{st}, {(k-22)*16384}""")
        srd = sW if k < 22 else sU
        for i in range(2):
            p(f"buffer_load_dwordx4 v{vD+i}, s[{srd}:{srd+3}], s{st} offen offset:{1024*i} lds", vm=("w", k))

    def hload(k):
        p(f"""s_min_u32 s{st}, s{sHo}, s{sumax}
            s_lshl_b32 s{st}, s{st}, 10
            s_add_u32 s{st}, s{st}, s{sHb}
            s_add_u32 s{sHo}, s{sHo}, 1
            s_cmp_eq_u32 s{sHo}, 22
            s_cselect_b32 s{sHo}, 0, s{sHo}""")
        for tt in range(2):
            p(f"buffer_load_dwordx4 {v(HF + 8*(k % 8) + 4*tt, 4)}, v{vH+tt}, s[{sS}:{sS+3}], s{st} offen sc1", vm=("h", k))

    WP = cfg["wpace"]
    for k in range(WP):
        wdma(k)
    p.wait(vm="h")
    ts.mark("hack")
    set_flag(p, 4, vt0, vt1)
    tr_addr_perm(p, vR, vl, vt0, vt1, 7)
    p(f"""s_and_b32 s{st}, s{sw}, 1
        s_lshl_b32 s{st}, s{st}, 6
        v_xor_b32 v{vR}, s{st}, v{vR}
        v_add_u32 v{vR}, s{sm0}, v{vR}
        v_xor_b32 v{vR+1}, 64, v{vR}
        s_lshr_b32 s{st}, s{sw}, 1
        s_mul_i32 s{st2}, s{st}, {86*1024}
        v_add_u32 v{vH}, s{st2}, v{vF}
        s_sub_u32 s{st2}, {86*1024}, s{st2}
        v_add_u32 v{vH+1}, s{st2}, v{vF}
        s_lshl_b32 s{st2}, s{st}, 15
        v_add_u32 v{vO}, s{st2}, v{vF}
        v_xor_b32 v{vO+1}, 0x8000, v{vO}
        s_lshr_b32 s{st}, s{sth}, 1
        s_lshl_b32 s{st}, s{st}, 11
        s_and_b32 s{st2}, s{sth}, 1
        s_lshl_b32 s{st2}, s{st2}, 3
        s_add_u32 s{st}, s{st}, s{st2}
        s_add_u32 s{st}, s{st}, {WS_F + 16}
        v_and_b32 v{vt1}, 1, v{vl}
        v_lshl_add_u32 v{vt1}, v{vt1}, 2, s{st}
        v_bfe_u32 v{vt0}, v{vl}, 1, 4
        v_lshl_add_u32 v{vP}, v{vt0}, 7, v{vt1}
        v_and_b32 v{vt0}, 3, v{vt0}
        v_lshl_add_u32 v{vt1}, v{vt0}, 7, v{vt1}
        s_lshl_b32 s{st}, s{sw}, 9
        s_add_u32 s{st}, s{st}, 16
        v_add_u32 v{vP+1}, s{st}, v{vt1}
        v_and_b32 v{vt0}, 31, v{vl}
        v_lshlrev_b32 v{vt0}, 10, v{vt0}
        v_lshrrev_b32 v{vt1}, 5, v{vl}
        v_lshl_add_u32 v{vXa}, v{vt1}, 5, v{vt0}""")
    for k in range(WP, RING):
        p.wait(vm=("w", k - WP))
        wdma(k)
    ts.mark("ring")
    poll(p, "fb_h", sS, vP, "0", vt2, 1)
    ts.mark("hpoll")
    p(f"s_setprio {cfg['prioB1']}")
    HD = cfg["hdepth"]
    for k in range(HD):
        hload(k)

    def wread2(k):
        for nt in range(2):
            r = (WF + 8 * (k & 1) if k < 22 else WO + 8 * (k - 22)) + 4 * nt
            off = 2048 * (k % RING)
            p(f"ds_read_b64_tr_b16 {v(r, 2)}, v{vR+nt} offset:{off}", lg=("w", k))
            p(f"ds_read_b64_tr_b16 {v(r+2, 2)}, v{vR+nt} offset:{off + 1024}", lg=("w", k))

    wread2(0)
    for k in range(22):
        p.wait(vm=("w", k + 1))
        wread2(k + 1)
        p.wait(vm=("h", k), lg=("w", k))
        for tt in range(2):
            for nt in range(2):
                acc = v(ACC + 32 * tt + 16 * nt, 16)
                p(mfma(acc, v(WF + 8 * (k & 1) + 4 * nt, 4), v(HF + 8 * (k % 8) + 4 * tt, 4), "0" if k == 0 else acc))
            if tt == 0 and k + HD < 22:
                hload(k + HD)
        if k + RING < 30:
            wdma(k + RING)
    sOut, sOb = sHb, sWb
    p(f"s_setprio {cfg['prioB2']}")
    p(f"""s_lshl_b32 s{sOut}, s{sth}, 1
        s_lshr_b32 s{st}, s{sw}, 1
        s_add_u32 s{sOut}, s{sOut}, s{st}
        s_lshl_b32 s{sOut}, s{sOut}, 15
        s_lshl_b32 s{st}, s{snt}, 1
        s_and_b32 s{st2}, s{sw}, 1
        s_add_u32 s{st}, s{st}, s{st2}
        s_lshl_b32 s{st}, s{st}, 6
        s_add_u32 s{sOut}, s{sOut}, s{st}
        s_lshl_b32 s{sOb}, s{sth}, 16
        s_lshl_b32 s{st}, s{sw}, 13
        s_add_u32 s{sOb}, s{sOb}, s{st}
        s_add_u32 s{sOb}, s{sOb}, {WS_O}
        s_add_u32 s{sk}, s{sOb}, 4096""")
    for i in range(2):
        p(f"buffer_load_dwordx4 {v(XR + 4*i, 4)}, v{vXa}, s[{sX}:{sX+3}], s{sOut} offen offset:{16*i}", vm="x")
    for k in range(23, 30):
        p.wait(vm=("w", k))
        wread2(k)
    p.wait(vm="x")
    for k in range(8):
        p(f"""v_lshlrev_b32 v{vt0}, 16, v{XR+k}
            v_and_b32 v{vt1}, 0xffff0000, v{XR+k}
            v_add_f32 v{ACC+2*k}, v{ACC+2*k}, v{vt0}
            v_add_f32 v{ACC+2*k+1}, v{ACC+2*k+1}, v{vt1}""")
    for q in range(1, 4):
        p(f"s_xor_b32 s{st}, s{sw}, {q}\ns_mul_i32 s{st}, s{st}, 12288\nv_add_u32 v{vRed+q}, s{st}, v{vF}")
    p(f"s_mul_i32 s{st}, s{sw}, 12288\nv_add_u32 v{vRed}, s{st}, v{vF}")
    p.wait(lg="all")
    ts.mark("dnend")
    p("s_barrier")
    ts.mark("barx")
    p(f"s_setprio 3")
    poll(p, "fb_o", sS, vP + 1, "0", vt2, 1)
    ts.mark("opoll")
    for k in range(8):
        for tt in range(2):
            p(f"buffer_load_dwordx4 {v(HF + 8*k + 4*tt, 4)}, v{vO+tt}, s[{sS}:{sS+3}], s{sOb if k < 4 else sk} offen offset:{1024*(k % 4)} sc1", vm=("o", k, tt))
    for k in range(8):
        for tt in (1, 0):
            p.wait(vm=("o", k, 1))
            for nt in (1, 0):
                acc = v(ACC + 32 * tt + 16 * nt, 16)
                p(mfma(acc, v(WO + 8 * k + 4 * nt, 4), v(HF + 8 * k + 4 * tt, 4), acc))
    ts.mark("omm")
    for q in (3, 2, 1):
        for i in range(4):
            p(f"ds_write_b128 v{vRed+q}, {v(ACC + 16*q + 4*i, 4)} offset:{4096*(q-1) + 1024*i}")
    p("s_waitcnt lgkmcnt(0)\ns_barrier")
    p.lg = []
    for q in range(1, 4):
        for i in range(4):
            p(f"ds_read_b128 {v(ACC + 16*q + 4*i, 4)}, v{vRed} offset:{4096*(q-1) + 1024*i}", lg=q)
    for q in range(1, 4):
        p.wait(lg=q)
        for r in range(16):
            p(f"v_add_f32 v{ACC+r}, v{ACC+r}, v{ACC + 16*q + r}")
    for k in range(8):
        p(f"v_cvt_pk_bf16_f32 v{XR+k}, v{ACC+2*k}, v{ACC+2*k+1}")
    for i in range(2):
        p(f"buffer_store_dwordx4 {v(XR + 4*i, 4)}, v{vXa}, s[{sO}:{sO+3}], s{sOut} offen offset:{16*i}")
    if ts.on:
        p(f"s_lshr_b32 s{st2}, s{sm0x}, 14")
    ts.flush(sS, f"s{st2}", 2)
```
